```python
import torch

def _softmax(x, axis=-1):
    return torch.softmax(x, dim=axis)
def _gelu(x):
    return torch.nn.functional.gelu(x, approximate="tanh")
def _silu(x):
    return torch.nn.functional.silu(x)
def _sigmoid(x):
    return torch.sigmoid(x)
def _layernorm(x, axis=-1, eps=1e-5):
    m = x.mean(dim=axis, keepdim=True)
    v = x.var(dim=axis, keepdim=True, unbiased=False)
    return (x - m) / torch.sqrt(v + eps)
def _scatter_add(tgt, idx, src, axis=0):
    return tgt.clone().index_add_(axis, idx, src)
def _segment_sum(src, seg, n):
    out = torch.zeros((n,) + src.shape[1:], dtype=src.dtype)
    return out.index_add_(0, seg, src)
def _pad(x, pw):
    flat = tuple(v for pair in reversed(pw) for v in pair)
    return torch.nn.functional.pad(x, flat)

kernel_name = 'gated_mix__mha_block__moe_arch_mod__prompt'

def setup_inputs():

    _w = (lambda a: (lambda t: t.to(torch.bfloat16) if t.is_floating_point() else t)(torch.as_tensor(a)))
    def _A_setup():
        B, S, D, H = 1, 2048, 512, 32
        return {
            "x": _w((lambda *s: torch.randn(*s, dtype=torch.bfloat16) * 0.05)(B, S, D)),
            "wqkv": _w((lambda *s: torch.randn(*s, dtype=torch.bfloat16) * 0.8)(D, 3 * D)),
            "wo": _w((lambda *s: torch.randn(*s, dtype=torch.bfloat16) * 0.1)(D, D)),
        }
    _A_in = _A_setup()

    def _B_setup():
        B, S, D, F, C = 1, 2048, 512, 1376, 1
        return {
            "x": _w((lambda *s: torch.randn(*s, dtype=torch.bfloat16) * 0.05)(B, S, D)),
            "w_r": _w((lambda *s: torch.randn(*s, dtype=torch.bfloat16) * 3.2)(D)),
            "w_gate": _w((lambda *s: torch.randn(*s, dtype=torch.bfloat16) * 0.2)(D, F)),
            "w_up": _w((lambda *s: torch.randn(*s, dtype=torch.bfloat16) * 0.2)(D, F)),
            "w_down": _w((lambda *s: torch.randn(*s, dtype=torch.bfloat16) * 0.2)(F, D)),
        }
    _B_in = _B_setup()

    return {
        "A_x": _A_in["x"],
        "A_wqkv": _A_in["wqkv"],
        "A_wo": _A_in["wo"],
        "B_x": _B_in["x"],
        "B_w_r": _B_in["w_r"],
        "B_w_gate": _B_in["w_gate"],
        "B_w_up": _B_in["w_up"],
        "B_w_down": _B_in["w_down"],
        "gate_w": _w((lambda *s: torch.randn(*s, dtype=torch.bfloat16) * 0.05)(512) * 16.0),
    }

def reference(A_x, A_wqkv, A_wo, B_x, B_w_r, B_w_gate, B_w_up, B_w_down, gate_w):
    def _A_ref(x, wqkv, wo):
        B, S, D = x.shape
        H = 32
        Dh = D // H
        qkv = (lambda x, *d: x.permute(*d))((x @ wqkv).reshape(B, S, 3, H, Dh), 2, 0, 3, 1, 4)
        q, k, v = qkv[0], qkv[1], qkv[2]
        scores = torch.einsum("bhqd,bhkd->bhqk", q, k) * (Dh ** -0.5)
        p = _softmax(scores, axis=-1)
        o = torch.einsum("bhqk,bhkd->bhqd", p, v)
        return (lambda x, *d: x.permute(*d))(o, 0, 2, 1, 3).reshape(B, S, D) @ wo

    def _B_ref(x, w_r, w_gate, w_up, w_down):
        B, S, D = x.shape
        C = 1
        r = x @ w_r
        idx = torch.argsort(-r, axis=-1)[:, :C]
        idx_e = (lambda x, n, axis: torch.repeat_interleave(x, n, dim=axis))(idx.reshape(B, C, 1), D, axis=2)
        x_sel = (lambda x, i, axis: torch.take_along_dim(x, i, dim=axis))(x, idx_e, axis=1)
        g = _silu(x_sel @ w_gate)
        u = x_sel @ w_up
        y = (g * u) @ w_down
        r_sel = _sigmoid((lambda x, i, axis: torch.take_along_dim(x, i, dim=axis))(r, idx, axis=1))
        y = y * r_sel.reshape(B, C, 1)
        b_off = (torch.arange(B) * S).reshape(B, 1)
        flat_idx = (idx + b_off).reshape(B * C)
        zero = (x * 0.0).reshape(B * S, D)
        upd = _scatter_add(zero, flat_idx, y.reshape(B * C, D), axis=0)
        return x + upd.reshape(B, S, D)

    x = A_x
    g = _sigmoid((x * gate_w).sum(-1, keepdims=True))
    a = _A_ref(x, A_wqkv, A_wo)
    b = _B_ref(x, B_w_r, B_w_gate, B_w_up, B_w_down)
    return g * a + (1 - g) * b
```

```python
import sys, struct

NAME = "gated_mix__mha_block__moe_arch_mod__prompt_kernel"
DIAG = "--diag" in sys.argv
FORCE_FB = "--forcefb" in sys.argv

KV_OFF, O_OFF, Q_OFF = 0, 0x400000, 0x600000
FL_OFF, OFL_OFF, RG_OFF, SEL_OFF, YP_OFF = 0x800000, 0x810000, 0x830000, 0x834000, 0x838000
STAMP_OFF = 0x900000
WS_SIZE = 0xA00000
OOB = 0x4000000
LX, LG, LQ = 0, 65536, 131072
RED_SLOT = 4608
RED_F0, RED_F1, RED_R0, RED_R1 = 0, 18432, 36864, 131072
MISC2 = 55296
SYNC = 149504
SY_RED = SYNC
SY_BAR = SYNC + 16
SY_KEY = SYNC + 20

def f2u(x): return struct.unpack("<I", struct.pack("<f", x))[0]
QSCALE = f2u(0.25 * 1.4426950408889634)
LOG2E = f2u(1.4426950408889634)

out = []
def E(s=""):
    for ln in s.split("\n"):
        out.append(ln)
def L(name): out.append(name + ":")

sW, sG, sTY, sB, sC, sROT, sTAG = "s3", "s4", "s5", "s6", "s7", "s8", "s9"
SX, SWQ, SWS, ST, ST2 = "s[40:43]", "s[44:47]", "s[48:51]", "s[52:55]", "s[56:59]"
sVM = "s[70:71]"
sSOFF, sSTEP, sRND, sBART, sSPIN, sHB, sGEN = "s72", "s73", "s74", "s75", "s76", "s77", "s78"
sRET = "s[80:81]"
sRET2 = "s[82:83]"
vLANE, vL16, vIDX, vVA = "v255", "v254", "v253", "v252"
vT0, vT1, vT2, vT3 = "v248", "v249", "v250", "v251"

stampn = [0]
def stamp(i):
    if not DIAG: return
    E(f"""    s_memtime s[84:85]
    s_waitcnt lgkmcnt(0)
    v_writelane_b32 v247, s84, {i}""")

def srd(reg, plo, size):
    n = int(reg[2:reg.index(":")])
    E(f"""    s_mov_b32 s{n}, s{plo}
    s_mov_b32 s{n+1}, s{plo+1}
    s_mov_b32 s{n+2}, {size:#x}
    s_mov_b32 s{n+3}, 0x20000""")

SPIN_MAX = 40000
lab = [0]
def newlab(p="L"):
    lab[0] += 1
    return f"{p}_{lab[0]}"

def poll_dword(vaddr, vdst, execmask=None, sleep=2):
    l0, l1 = newlab("poll"), newlab("polldone")
    if execmask: E(f"    s_mov_b64 exec, {execmask}")
    E(f"    s_mov_b32 {sSPIN}, 0")
    L(l0)
    E(f"""    buffer_load_dword {vdst}, {vaddr}, {SWS}, 0 offen sc1
    s_add_u32 {sSPIN}, {sSPIN}, 1
    s_waitcnt vmcnt(0)
    v_cmp_ne_u32 vcc, {sTAG}, {vdst}
    s_cbranch_vccz {l1}
    s_sleep {sleep}
    s_cmp_lt_u32 {sSPIN}, {SPIN_MAX}
    s_cbranch_scc1 {l0}""")
    L(l1)
    if execmask: E("    s_mov_b64 exec, -1")

E(f"""; fused gated-mix(MHA, top-1 MoD FFN) kernel: QKV GEMM -> attention -> out-proj + mix, one launch
; @launch grid=(256,1,1) block=(512,1,1) lds=163840
.amdgcn_target "amdgcn-amd-amdhsa--gfx950"
.text
.globl {NAME}
.p2align 8
.type {NAME},@function
{NAME}:
    s_cmp_ge_u32 s2, 256
    s_cbranch_scc1 L_end
    s_load_dwordx16 s[16:31], s[0:1], 0
    s_load_dwordx8 s[32:39], s[0:1], 64
    v_lshrrev_b32 v1, 6, v0
    v_and_b32 {vLANE}, 63, v0
    s_and_b32 s10, s2, 7
    s_lshr_b32 s11, s2, 3                ; slot
    v_readfirstlane_b32 {sW}, v1
    s_lshr_b32 {sG}, s10, 1
    s_and_b32 {sTY}, s11, 1
    s_and_b32 s12, s10, 1
    s_lshl_b32 s12, s12, 4
    s_lshr_b32 s13, s11, 1
    s_or_b32 {sB}, s12, s13
    s_lshl_b32 {sC}, {sG}, 1
    s_or_b32 {sC}, {sC}, {sTY}
    s_lshl_b32 s12, {sTY}, 2
    s_add_u32 {sROT}, s13, s12
    s_and_b32 {sROT}, {sROT}, 7
    v_lshlrev_b32 {vL16}, 4, {vLANE}""")
if DIAG:
    E("    v_mov_b32 v247, 0")
    stamp(0)
E(f"""    s_cmp_lt_u32 {sW}, 4
    s_cbranch_scc1 L_front""")

E(f"""    s_sub_u32 s10, {sW}, 4                ; rw
    v_lshrrev_b32 v2, 3, {vLANE}
    v_and_b32 v3, 7, {vLANE}
    v_lshrrev_b32 v4, 4, {vLANE}
    v_xor_b32 v5, v3, v4
    v_lshlrev_b32 v5, 4, v5
    v_lshl_add_u32 v10, v2, 10, v5        ; x even
    v_xor_b32 v11, 64, v10
    v_add_u32 v11, 0x2000, v11            ; x odd
    v_and_b32 v4, 1, v4
    v_lshlrev_b32 v4, 2, v4
    v_xor_b32 v5, v3, v4
    v_lshlrev_b32 v5, 4, v5
    v_mul_u32_u24 v12, 0xc00, v2
    v_add_u32 v12, v12, v5                ; g even
    v_add_u32 v13, 0x6000, v12            ; g odd
    s_lshl_b32 s60, {sB}, 16
    s_lshl_b32 s61, s10, 14
    s_add_u32 s60, s60, s61
    s_add_u32 s61, {sTY}, 1
    s_lshl_b32 s61, s61, 10
    s_lshl_b32 s62, {sG}, 7
    s_add_u32 s61, s61, s62
    s_mul_i32 s63, s10, 0xc000
    s_add_u32 s64, s61, s63
    s_lshl_b32 s65, s10, 11
    s_mov_b32 s66, {sROT}
    s_mov_b32 s67, 0
    s_waitcnt lgkmcnt(0)""")
srd(SX, 16, 0x200000)
srd(SWQ, 18, 0x180000)
L("L_dma1")
E(f"""    s_lshl_b32 s11, s66, 7
    s_add_u32 s11, s11, s60
    s_mul_i32 s12, s66, 0x30000
    s_add_u32 s12, s12, s64
    s_mov_b32 m0, s65
    s_add_u32 s66, s66, 1
    buffer_load_dwordx4 v10, {SX}, s11 offen lds
    s_add_u32 m0, s65, 0x400
    s_and_b32 s66, s66, 7
    buffer_load_dwordx4 v11, {SX}, s11 offen lds
    s_add_u32 m0, s65, {LG:#x}
    s_add_u32 s67, s67, 1
    buffer_load_dwordx4 v12, {SWQ}, s12 offen lds
    s_add_u32 m0, s65, {LG+0x400:#x}
    s_add_u32 s65, s65, 0x2000
    buffer_load_dwordx4 v13, {SWQ}, s12 offen lds
    s_cmp_lt_u32 s67, 4
    s_cbranch_scc1 L_dma1
    s_waitcnt vmcnt(12)
    s_barrier
    s_cmp_lt_u32 s67, 8
    s_cbranch_scc1 L_dma1""")
srd(SWS, 38, WS_SIZE)
E(f"""    v_lshrrev_b32 v2, 2, {vLANE}
    v_and_b32 v3, 3, {vLANE}
    v_mul_u32_u24 v14, 0xc00, v2
    v_lshl_add_u32 v14, v3, 4, v14
    s_lshl_b32 s61, {sTY}, 6
    s_add_u32 s61, s61, s62               ; G*128 + ty*64
    s_add_u32 s68, s61, s63
    s_lshl_b32 s65, s10, 10
    s_add_u32 s65, s65, {LQ:#x}
    s_mov_b32 s67, 0""")
L("L_dmaq")
E(f"""    s_mul_i32 s12, s66, 0x30000
    s_add_u32 s12, s12, s68
    s_mov_b32 m0, s65
    s_add_u32 s66, s66, 1
    s_and_b32 s66, s66, 7
    buffer_load_dwordx4 v14, {SWQ}, s12 offen lds
    s_add_u32 s65, s65, 0x1000
    s_add_u32 s67, s67, 1
    s_and_b32 s11, s67, 3
    s_cbranch_scc1 L_dmaq
    s_waitcnt vmcnt(12)
    s_barrier
    s_cmp_lt_u32 s67, 8
    s_cbranch_scc1 L_dmaq
    s_waitcnt vmcnt(8)
    s_barrier
    s_waitcnt vmcnt(0)
    s_barrier                             ; barrier A
    s_cmp_ge_u32 {sW}, 6
    s_cbranch_scc1 L_r67""")
def xaddr_setup(s_tt):
    E(f"""    v_and_b32 v2, 31, {vLANE}
    v_lshrrev_b32 v3, 5, {vLANE}
    v_bfe_u32 v4, {vLANE}, 1, 3
    v_xor_b32 v4, v4, v3                  ; (hh ^ f)
    v_lshlrev_b32 v4, 4, v4
    v_lshl_add_u32 v48, v2, 7, v4
    s_lshl_b32 s11, {s_tt}, 12
    v_add_u32 v48, s11, v48
    v_xor_b32 v49, 32, v48
    v_xor_b32 v50, 64, v48
    v_xor_b32 v51, 0x60, v48""")
def zero_acc(base=0):
    for i in range(0, 16, 2):
        E(f"    v_mov_b64 v[{base+i}:{base+i+1}], 0")

E(f"    s_and_b32 s69, {sW}, 1")
xaddr_setup("s69")
E(f"""    v_bfe_u32 v2, {vLANE}, 2, 2           ; r
    v_lshrrev_b32 v3, 5, {vLANE}          ; hh
    v_lshl_add_u32 v2, v3, 3, v2
    v_lshlrev_b32 v2, 6, v2               ; (8hh+r)*64
    v_bfe_u32 v3, {vLANE}, 4, 1
    v_lshl_add_u32 v2, v3, 5, v2
    v_and_b32 v3, 3, {vLANE}
    v_lshl_add_u32 v2, v3, 3, v2
    v_add_u32 v52, {LQ:#x}, v2
    s_lshl_b32 s79, s2, 13
    s_lshl_b32 s11, s69, 10
    s_add_u32 s79, s79, s11
    s_add_u32 s79, s79, {Q_OFF:#x}
    s_call_b64 {sRET2}, L_qtile
    s_barrier                             ; barrier B
    s_mul_i32 s63, s69, 0x18000
    s_add_u32 s68, s61, s63
    s_add_u32 s68, s68, 0x200
    s_lshl_b32 s65, s69, 11
    s_add_u32 s65, s65, {LQ:#x}
    s_mov_b32 s67, 0""")
L("L_dmaq2")
E(f"""    s_mul_i32 s12, s66, 0x30000
    s_add_u32 s12, s12, s68
    s_mov_b32 m0, s65
    s_add_u32 s66, s66, 1
    s_and_b32 s66, s66, 7
    buffer_load_dwordx4 v14, {SWQ}, s12 offen lds
    s_add_u32 m0, s65, 0x400
    s_add_u32 s12, s12, 0xc000
    s_add_u32 s65, s65, 0x1000
    buffer_load_dwordx4 v14, {SWQ}, s12 offen lds
    s_add_u32 s67, s67, 1
    s_cmp_lt_u32 s67, 8
    s_cbranch_scc1 L_dmaq2
    s_waitcnt vmcnt(0)
    s_barrier                             ; barrier C
    v_subrev_u32 v48, 0x10000, v48
    v_subrev_u32 v49, 0x10000, v49
    v_subrev_u32 v50, 0x10000, v50
    v_subrev_u32 v51, 0x10000, v51
    v_subrev_u32 v52, 0x8000, v52
    s_add_u32 s79, s79, 0x1000
    s_call_b64 {sRET2}, L_qtile
    s_waitcnt vmcnt(0)
    s_branch L_barE""")

L("L_r67")
E(f"""    s_and_b32 s69, {sW}, 1
    s_add_u32 s61, {sTY}, 1
    s_lshl_b32 s61, s61, 10
    s_add_u32 s61, s61, s62
    s_add_u32 s61, s61, 0x200
    s_mul_i32 s63, s69, 0x18000           ; 32 rows
    s_add_u32 s64, s61, s63
    s_lshl_b32 s65, s69, 12
    s_add_u32 s65, s65, {LG:#x}
    s_mov_b32 s67, 0""")
L("L_dmag2")
E(f"""    s_mul_i32 s12, s66, 0x30000
    s_add_u32 s12, s12, s64
    s_mov_b32 m0, s65
    s_add_u32 s66, s66, 1
    s_and_b32 s66, s66, 7
    buffer_load_dwordx4 v12, {SWQ}, s12 offen lds
    s_add_u32 m0, s65, 0x400
    s_add_u32 s67, s67, 1
    buffer_load_dwordx4 v13, {SWQ}, s12 offen lds
    s_add_u32 m0, s65, 0x800
    s_add_u32 s12, s12, 0xc000
    buffer_load_dwordx4 v12, {SWQ}, s12 offen lds
    s_add_u32 m0, s65, 0xc00
    s_add_u32 s65, s65, 0x2000
    buffer_load_dwordx4 v13, {SWQ}, s12 offen lds
    s_cmp_lt_u32 s67, 8
    s_cbranch_scc1 L_dmag2
    s_barrier                             ; barrier B
    s_waitcnt vmcnt(0)
    s_barrier                             ; barrier C
    s_branch L_barE""")

def gemm_loop(label, kind):
    ks_s, h_s, c_s = (1024, 256, 0x1000) if kind == "Q" else (2048, 512, 0x2000)
    L(label)
    zero_acc()
    E("    s_mov_b32 s60, 8")
    L(label + "_l")
    if kind != "Q":
        E(f"""    s_cmp_lg_u32 {sGEN}, 0
    s_cbranch_scc1 {label}_nb
    s_barrier""")
        L(label + "_nb")
    for ks in range(4):
        E(f"""    ds_read_b128 v[{16+4*ks}:{19+4*ks}], v{48+ks}
    ds_read_b64_tr_b16 v[{32+4*ks}:{33+4*ks}], v52 offset:{ks*ks_s}
    ds_read_b64_tr_b16 v[{34+4*ks}:{35+4*ks}], v52 offset:{ks*ks_s+h_s}""")
    for ks in range(4):
        E(f"    v_add_u32 v{48+ks}, 0x2000, v{48+ks}")
    E(f"    v_add_u32 v52, {c_s:#x}, v52")
    E("    s_sub_u32 s60, s60, 1")
    for ks in range(4):
        E(f"    s_waitcnt lgkmcnt({9-3*ks})")
        x, w = f"v[{16+4*ks}:{19+4*ks}]", f"v[{32+4*ks}:{35+4*ks}]"
        if kind == "V":
            E(f"    v_mfma_f32_32x32x16_bf16 v[0:15], {x}, {w}, v[0:15]")
        else:
            E(f"    v_mfma_f32_32x32x16_bf16 v[0:15], {w}, {x}, v[0:15]")
    E(f"""    s_cmp_lg_u32 s60, 0
    s_cbranch_scc1 {label}_l
    s_nop 9
    s_setpc_b64 {sRET}""")

L("L_qtile")
E(f"    s_call_b64 {sRET}, L_gemmQ")
E(f"    s_mov_b32 s11, {QSCALE:#x}")
for i in range(16):
    E(f"    v_mul_f32 v{i}, s11, v{i}")
for i in range(8):
    E(f"    v_cvt_pk_bf16_f32 v{16+i}, v{2*i}, v{2*i+1}")
E(f"""    buffer_store_dwordx4 v[16:19], {vL16}, {SWS}, s79 offen
    buffer_store_dwordx4 v[20:23], {vL16}, {SWS}, s79 offen offset:2048
    s_setpc_b64 {sRET2}""")
gemm_loop("L_gemmQ", "Q")
gemm_loop("L_gemmK", "K")
gemm_loop("L_gemmV", "V")

L("L_front")
E(f"""    s_and_b32 s69, {sW}, 1                ; tt
    s_lshr_b32 s68, {sW}, 1               ; ch""")
xaddr_setup("s69")
E(f"""    v_bfe_u32 v2, {vLANE}, 2, 2           ; r
    v_lshrrev_b32 v3, 5, {vLANE}          ; hh
    v_lshl_add_u32 v4, v3, 3, v2
    v_lshlrev_b32 v4, 7, v4               ; (8hh+r)*128
    v_lshrrev_b32 v2, 1, v2
    v_xor_b32 v2, s68, v2
    v_lshl_add_u32 v4, v2, 6, v4
    v_bfe_u32 v5, {vLANE}, 4, 1
    v_lshl_add_u32 v4, v5, 5, v4
    v_and_b32 v2, 3, {vLANE}
    v_lshl_add_u32 v4, v2, 3, v4
    v_add_u32 v52, {LG:#x}, v4
    v_and_b32 v2, 0x33, {vLANE}
    v_bfe_u32 v4, {vLANE}, 2, 1
    v_lshl_or_b32 v2, v4, 3, v2
    v_bfe_u32 v4, {vLANE}, 3, 1
    v_lshl_or_b32 v2, v4, 2, v2
    v_lshlrev_b32 v53, 4, v2
    v_and_b32 v2, 15, {vLANE}
    v_lshlrev_b32 v2, 4, v2
    v_lshl_add_u32 v2, v3, 8, v2          ; hh*256 + d*16
    v_lshl_add_u32 v4, v5, 17, v2
    v_add_u32 v4, 0x400, v4               ; V type
    s_cmp_eq_u32 {sTY}, 1
    s_cselect_b64 vcc, -1, 0
    s_movk_i32 s67, 0x200
    s_cselect_b32 s67, s67, 0x20000
    v_cndmask_b32 v53, v53, v4, vcc
    s_lshl_b32 s66, {sG}, 1
    s_add_u32 s66, s66, s68
    s_lshl_b32 s66, s66, 18
    s_lshl_b32 s11, {sB}, 1
    s_add_u32 s11, s11, s69
    s_lshl_b32 s11, s11, 11
    s_add_u32 s66, s66, s11
    v_lshrrev_b32 v2, 3, {vLANE}
    v_add_u32 v4, {sROT}, v2
    v_and_b32 v4, 7, v4
    v_and_b32 v5, 7, {vLANE}
    v_lshlrev_b32 v6, 4, v5
    v_lshl_add_u32 v54, v4, 7, v6         ; w offset
    s_lshl_b32 s11, {sC}, 2
    s_add_u32 s11, s11, {sW}              ; row>>1
    s_and_b32 s12, s11, 7
    v_xor_b32 v5, s12, v5
    v_lshlrev_b32 v5, 4, v5
    v_lshl_add_u32 v5, v2, 13, v5
    s_lshl_b32 s11, s11, 8
    v_add_u32 v55, s11, v5
    s_mov_b32 {sGEN}, 0
    s_waitcnt lgkmcnt(0)""")
srd(SWS, 38, WS_SIZE)
srd(ST, 24, 1024)
srd(ST2, 32, 1024)
srd(SX, 16, 0x200000)
srd(SWQ, 36, 256)
E(f"""    s_or_b32 s11, s2, {sW}
    s_cmp_lg_u32 s11, 0
    s_cbranch_scc1 L_noepoch
    s_memrealtime s[12:13]
    v_mov_b32 v3, 0
    s_waitcnt lgkmcnt(0)
    s_or_b32 s12, s12, 1
    v_mov_b32 v2, s12
    s_mov_b64 exec, 1
    buffer_store_dword v2, v3, {SWQ}, 0 offen sc0 sc1
    s_mov_b64 exec, -1""")
L("L_noepoch")
E(f"""    buffer_load_dwordx4 v[56:59], v54, {ST}, 0 offen
    buffer_load_dwordx4 v[60:63], v54, {ST2}, 0 offen""")
L("L_gen")
E(f"""    s_cmp_eq_u32 {sTY}, 1
    s_cbranch_scc1 L_genV
    s_call_b64 {sRET}, L_gemmK
    s_branch L_genE""")
L("L_genV")
E(f"    s_call_b64 {sRET}, L_gemmV")
L("L_genE")
for i in range(8):
    E(f"    v_cvt_pk_bf16_f32 v{16+i}, v{2*i}, v{2*i+1}")
E(f"""    s_add_u32 s11, s66, s67
    buffer_store_dwordx4 v[16:19], v53, {SWS}, s66 offen sc1
    buffer_store_dwordx4 v[20:23], v53, {SWS}, s11 offen sc1
    s_cmp_lg_u32 {sGEN}, 0
    s_cbranch_scc1 L_gen2done""")
stamp(1)
E(f"""    s_barrier                             ; barrier A
    ds_read_b128 v[24:27], v55
    ds_read_b128 v[28:31], v55 offset:128
    v_mov_b32 v3, 0
    s_mov_b32 {sSPIN}, 0""")
L("L_tag")
E(f"""    buffer_load_dword v2, v3, {SWQ}, 0 offen sc0 sc1
    s_add_u32 {sSPIN}, {sSPIN}, 1
    s_waitcnt vmcnt(0)
    v_readfirstlane_b32 {sTAG}, v2
    s_cmp_ge_u32 {sSPIN}, {SPIN_MAX}
    s_cbranch_scc1 L_tagok
    s_cmp_eq_u32 {sTAG}, 0
    s_cbranch_scc1 L_tag""")
L("L_tagok")
stamp(2)
E(f"""    s_barrier
    s_cmp_lg_u32 {sW}, 0
    s_cbranch_scc1 L_noflag1
    s_lshl_b32 s11, {sC}, 5
    s_add_u32 s11, s11, {sB}
    s_lshl_b32 s11, s11, 7
    s_add_u32 s65, s11, {FL_OFF:#x}
    v_mov_b32 v2, {sTAG}
    v_mov_b32 v3, s65
    s_mov_b64 exec, 1
    buffer_store_dword v2, v3, {SWS}, 0 offen sc1
    s_mov_b64 exec, -1""")
L("L_noflag1")
E("    s_waitcnt lgkmcnt(0)")
for j, (xr, wr) in enumerate(((24, 56), (24, 60), (28, 56), (28, 60))):
    E(f"    v_mov_b32 v{32+j}, 0")
for q in range(4):
    for j, (xr, wr) in enumerate(((24, 56), (24, 60), (28, 56), (28, 60))):
        E(f"    v_dot2_f32_bf16 v{32+j}, v{xr+q}, v{wr+q}, v{32+j}")
E("    s_nop 2")
for dpp in ("quad_perm:[1,0,3,2] row_mask:0xf bank_mask:0xf", "quad_perm:[2,3,0,1] row_mask:0xf bank_mask:0xf",
            "row_half_mirror row_mask:0xf bank_mask:0xf", "row_mirror row_mask:0xf bank_mask:0xf",
            "row_bcast:15 row_mask:0xa bank_mask:0xf", "row_bcast:31 row_mask:0xc bank_mask:0xf"):
    for j in range(4):
        E(f"    v_add_f32_dpp v{32+j}, v{32+j}, v{32+j} {dpp}")
E(f"""    v_cvt_pk_bf16_f32 v36, v32, v34       ; r0 | r1<<16
    v_cvt_pk_bf16_f32 v37, v33, v35       ; z0 | z1<<16
    s_mov_b32 s11, {LOG2E:#x}
    v_lshlrev_b32 v38, 16, v37
    v_and_b32 v39, 0xffff0000, v37
    v_mul_f32 v38, s11, v38
    v_mul_f32 v39, s11, v39
    v_exp_f32 v38, -v38
    v_exp_f32 v39, -v39
    v_lshlrev_b32 v40, 16, v36            ; r0 bits
    v_and_b32 v41, 0xffff0000, v36        ; r1 bits
    v_add_f32 v38, 1.0, v38
    v_add_f32 v39, 1.0, v39
    v_rcp_f32 v38, v38
    v_rcp_f32 v39, v39
    v_ashrrev_i32 v42, 31, v40
    v_ashrrev_i32 v43, 31, v41
    v_cvt_pk_bf16_f32 v46, v38, v39       ; g0 | g1<<16
    v_or_b32 v42, 0x80000000, v42
    v_or_b32 v43, 0x80000000, v43
    v_xor_b32 v40, v40, v42
    v_xor_b32 v41, v41, v43
    v_and_b32 v40, 0xffff0000, v40
    v_and_b32 v41, 0xffff0000, v41
    s_lshl_b32 s11, {sB}, 5
    s_lshl_b32 s12, {sC}, 2
    s_add_u32 s11, s11, s12
    s_add_u32 s11, s11, {sW}
    s_lshl_b32 s12, s11, 1
    s_sub_u32 s12, 2047, s12
    s_sub_u32 s13, s12, 1
    v_or_b32 v40, s12, v40
    v_or_b32 v41, s13, v41
    v_max_u32 v44, v40, v41
    v_mov_b32 v45, {sTAG}
    v_mov_b32 v47, {sTAG}
    s_lshl_b32 s11, s11, 4
    s_add_u32 s11, s11, {RG_OFF:#x}
    v_mov_b32 v3, s11
    s_mov_b32 exec_lo, 0
    s_mov_b32 exec_hi, 0x80000000
    buffer_store_dwordx4 v[44:47], v3, {SWS}, 0 offen sc1
    s_mov_b64 exec, -1
    v_subrev_u32 v48, 0x10000, v48
    v_subrev_u32 v49, 0x10000, v49
    v_subrev_u32 v50, 0x10000, v50
    v_subrev_u32 v51, 0x10000, v51
    v_subrev_u32 v52, 0x10000, v52
    s_add_u32 s66, s66, 0x200000          ; heads + 16
    s_mov_b32 {sGEN}, 1
    s_barrier                             ; barrier C
    s_branch L_gen""")
L("L_gen2done")
E("    s_waitcnt vmcnt(0)")
L("L_barE")
stamp(3)
E(f"""    s_barrier                             ; barrier E
    s_cmp_lg_u32 {sW}, 0
    s_cbranch_scc1 L_noflag2
    s_add_u32 s65, s65, 0x8000
    v_mov_b32 v2, {sTAG}
    v_mov_b32 v3, s65
    v_mov_b32 v4, 0
    v_lshlrev_b32 v5, 2, {vLANE}
    v_add_u32 v5, {SYNC:#x}, v5
    ds_write_b32 v5, v4
    s_mov_b64 exec, 1
    buffer_store_dword v2, v3, {SWS}, 0 offen sc1
    s_mov_b64 exec, -1
    s_waitcnt lgkmcnt(0)""")
L("L_noflag2")
srd(ST, 36, 256)
E(f"""    s_cmp_lt_u32 {sW}, 4
    s_cbranch_scc1 L_havetag
    v_mov_b32 v3, 0
    buffer_load_dword v2, v3, {ST}, 0 offen sc0 sc1
    s_waitcnt vmcnt(0)
    v_readfirstlane_b32 {sTAG}, v2""")
L("L_havetag")
E(f"""    s_barrier
    ; ---------------- attention setup ----------------
    s_lshr_b32 s10, {sW}, 2               ; hs
    s_and_b32 s11, {sW}, 3                ; kq
    s_lshl_b32 s12, s2, 13
    s_lshl_b32 s13, s10, 11
    s_add_u32 s12, s12, s13
    s_add_u32 s12, s12, {Q_OFF:#x}
    s_add_u32 s13, s12, 0x1000
    buffer_load_dwordx4 v[64:67], {vL16}, {SWS}, s12 offen sc1
    buffer_load_dwordx4 v[68:71], {vL16}, {SWS}, s12 offen offset:1024 sc1
    buffer_load_dwordx4 v[72:75], {vL16}, {SWS}, s13 offen sc1
    buffer_load_dwordx4 v[76:79], {vL16}, {SWS}, s13 offen offset:1024 sc1
    s_lshl_b32 s14, {sC}, 1
    s_add_u32 {sHB}, s14, s10
    s_lshl_b32 {sSOFF}, {sHB}, 17
    s_lshl_b32 s12, s11, 15
    s_add_u32 {sSOFF}, {sSOFF}, s12
    s_mov_b32 s70, 0xffff
    s_mov_b32 s71, 0xffff
    v_mov_b32 {vIDX}, 0xdddddddd
    v_lshrrev_b32 v2, 5, {vLANE}
    v_and_b32 v3, 15, {vLANE}
    v_lshlrev_b32 v3, 4, v3
    v_lshl_add_u32 {vVA}, v2, 8, v3
    v_and_b32 v2, 7, {vLANE}
    v_bfe_u32 v3, {vLANE}, 3, 1
    v_lshl_add_u32 v2, v3, 5, v2
    s_lshl_b32 s12, {sG}, 6
    s_lshl_b32 s13, s11, 3
    s_add_u32 s12, s12, s13
    v_add_u32 v2, s12, v2
    v_lshlrev_b32 v2, 7, v2
    v_add_u32 v246, {FL_OFF:#x}, v2
    s_mov_b32 s12, 0x3f803f80""")
for j in range(8):
    for r in range(4, 12):
        E(f"    v_mov_b32 v{80+12*j+r}, s12")
for r in range(4, 12):
    E(f"    v_mov_b32 v{176+r}, s12")
poll_dword("v246", vT0, "0xffff")
stamp(4)
def tile_loads(slot, odd):
    b = 80 + 12 * slot
    o = 2048 if odd else 0
    E(f"""    buffer_load_dwordx4 v[{b}:{b+3}], {vL16}, {SWS}, {sSOFF} offen offset:{o} sc1
    s_mov_b64 exec, {sVM}
    buffer_load_dwordx4 v[{b+4}:{b+7}], {vVA}, {SWS}, {sSOFF} offen offset:{o+1024} sc1
    buffer_load_dwordx4 v[{b+8}:{b+11}], {vVA}, {SWS}, {sSOFF} offen offset:{o+1536} sc1
    s_mov_b64 exec, -1""")
for t in range(7):
    if t and t % 2 == 0:
        E(f"    s_add_u32 {sSOFF}, {sSOFF}, 0x1000")
    tile_loads(t, t & 1)
E(f"    s_mov_b32 {sRND}, 0")
E(f"    s_mov_b32 {sBART}, 0")
L("L_round")
for i in range(0, 10, 2):
    E(f"    v_mov_b64 v[{32+i}:{33+i}], 0")
    E(f"    v_mov_b64 v[{48+i}:{49+i}], 0")
for i in range(24, 32, 2):
    E(f"    v_mov_b64 v[{i}:{i+1}], 0")
E(f"""    s_waitcnt vmcnt(18)
    v_mfma_f32_32x32x16_bf16 v[0:15], v[80:83], v[64:67], 0
    s_mov_b32 {sSTEP}, 0x1000
    s_nop 9""")
if DIAG:
    E(f"    s_cmp_lg_u32 {sRND}, 0\n    s_cbranch_scc1 L_nost5")
    stamp(5)
    L("L_nost5")
E(f"""    s_call_b64 {sRET}, L_pass
    s_mov_b32 {sSTEP}, {OOB:#x}
    s_cmp_lg_u32 {sRND}, 0
    s_cbranch_scc1 L_passB
    v_add_u32 v246, 0x8000, v246""")
poll_dword("v246", vT0, "0xffff")
E(f"    s_mov_b32 {sSTEP}, {16*0x20000 - 0x7000:#x}")
L("L_passB")
E(f"""    s_call_b64 {sRET}, L_pass
    s_nop 1
    v_smfmac_f32_32x32x32_bf16 v[48:63], v[{80+84+8}:{80+84+11}], v[24:31], {vIDX}
    ; ---- partial results to LDS ----
    s_lshr_b32 s10, {sW}, 2
    s_lshl_b32 s10, s10, 1
    s_add_u32 s10, s10, {sRND}
    s_mul_i32 s79, s10, 18432
    s_cmp_eq_u32 s10, 3
    s_cselect_b32 s79, {RED_R1}, s79
    s_and_b32 s11, {sW}, 3
    s_mul_i32 s11, s11, {RED_SLOT}
    s_add_u32 s11, s11, s79
    v_add_u32 {vT0}, s11, {vL16}
    v_lshl_add_u32 {vT1}, {vLANE}, 2, s11
    s_lshl_b32 s10, s10, 2
    s_add_u32 s10, s10, {SY_RED}
    v_mov_b32 {vT2}, s10
    v_mov_b32 {vT3}, 1
    ds_write_b128 {vT0}, v[32:35]
    ds_write_b128 {vT0}, v[36:39] offset:1024
    ds_write_b32 {vT1}, v40 offset:2048
    ds_write_b128 {vT0}, v[48:51] offset:2304
    ds_write_b128 {vT0}, v[52:55] offset:3328
    ds_write_b32 {vT1}, v56 offset:4352
    s_waitcnt lgkmcnt(0)
    s_mov_b64 exec, 1
    ds_add_rtn_u32 {vT3}, {vT2}, {vT3}
    s_mov_b64 exec, -1
    s_waitcnt lgkmcnt(0)
    v_readfirstlane_b32 s10, {vT3}
    s_cmp_lg_u32 s10, 3
    s_cbranch_scc1 L_nofin
    ; ---- finalize (last arriver) ----
    v_add_u32 {vT0}, s79, {vL16}
    v_lshl_add_u32 {vT1}, {vLANE}, 2, s79
    s_lshl_b32 s61, {sB}, 16
    s_lshl_b32 s10, {sHB}, 10
    s_add_u32 s61, s61, s10
    s_add_u32 s61, s61, {O_OFF:#x}
    s_mov_b32 s62, 0                      ; qt""")
L("L_fin")
for s in range(4):
    E(f"""    ds_read_b128 v[{12*s}:{12*s+3}], {vT0} offset:{s*RED_SLOT}
    ds_read_b128 v[{12*s+4}:{12*s+7}], {vT0} offset:{s*RED_SLOT+1024}
    ds_read_b32 v{12*s+8}, {vT1} offset:{s*RED_SLOT+2048}""")
E("    s_waitcnt lgkmcnt(6)")
for i in range(9): E(f"    v_add_f32 v{i}, v{i}, v{12+i}")
E("    s_waitcnt lgkmcnt(0)")
for i in range(9): E(f"    v_add_f32 v{24+i}, v{24+i}, v{36+i}")
for i in range(9): E(f"    v_add_f32 v{48+i}, v{i}, v{24+i}")
E(f"""    v_add_f32 v0, v48, v49
    v_add_f32 v1, v50, v51
    v_add_f32 v2, v52, v53
    v_add_f32 v3, v54, v55
    v_add_f32 v0, v0, v1
    v_add_f32 v2, v2, v3
    s_mov_b32 s10, {f2u(2.0**-40):#x}
    s_mov_b32 s11, {f2u(2.0**60):#x}
    v_add_f32 v0, v0, v2
    v_cmp_nle_f32 s[12:13], s10, v56
    v_cmp_nge_f32 s[14:15], s11, v56
    v_mov_b32 v1, 0x207
    v_cmp_class_f32 vcc, v0, v1
    s_or_b64 s[12:13], s[12:13], s[14:15]
    s_or_b64 vcc, vcc, s[12:13]""")
if FORCE_FB:
    E("    s_mov_b64 vcc, -1")
E("    s_cbranch_vccnz L_fallback")
L("L_norm")
E("    v_rcp_f32 v57, v56\n    s_nop 0")
for i in range(8): E(f"    v_mul_f32 v{48+i}, v{48+i}, v57")
for i in range(4): E(f"    v_cvt_pk_bf16_f32 v{60+i}, v{48+2*i}, v{49+2*i}")
E(f"""    buffer_store_dwordx4 v[60:63], {vL16}, {SWS}, s61 offen sc1
    v_add_u32 {vT0}, 2304, {vT0}
    v_add_u32 {vT1}, 2304, {vT1}
    s_add_u32 s61, s61, 0x8000
    s_add_u32 s62, s62, 1
    s_cmp_lt_u32 s62, 2
    s_cbranch_scc1 L_fin
    s_lshl_b32 s10, {sB}, 5
    s_add_u32 s10, s10, {sHB}
    s_lshl_b32 s10, s10, 7
    s_add_u32 s10, s10, {OFL_OFF:#x}
    v_mov_b32 v0, {sTAG}
    v_mov_b32 v1, s10
    s_waitcnt vmcnt(0)
    s_mov_b64 exec, 1
    buffer_store_dword v0, v1, {SWS}, 0 offen sc1
    s_mov_b64 exec, -1""")
L("L_nofin")
E(f"""    s_cmp_lg_u32 {sRND}, 0
    s_cbranch_scc1 L_attdone
    s_mov_b32 {sRND}, 1
    s_add_u32 {sHB}, {sHB}, 16""")
for i in range(0, 8, 2):
    E(f"    v_mov_b64 v[{64+i}:{65+i}], v[{72+i}:{73+i}]")
stamp(6)
E(f"""    s_cmp_ge_u32 {sW}, 4
    s_cbranch_scc1 L_round
    ; F waves: Wo slab -> LDS (k rows 128w..128w+127, 64 columns)""")
srd(ST, 20, 0x80000)
E(f"""    v_lshrrev_b32 v2, 3, {vLANE}
    v_and_b32 v3, 7, {vLANE}
    v_bfe_u32 v4, {vLANE}, 4, 1
    v_lshlrev_b32 v4, 2, v4
    v_xor_b32 v3, v3, v4
    v_lshlrev_b32 v3, 4, v3
    v_lshl_add_u32 v2, v2, 10, v3
    s_lshl_b32 s10, {sW}, 17
    s_lshl_b32 s11, {sC}, 7
    s_add_u32 s10, s10, s11
    s_lshl_b32 s11, {sW}, 14
    s_add_u32 s11, s11, {LG:#x}
    s_mov_b32 s12, 16""")
L("L_dmawo")
E(f"""    s_mov_b32 m0, s11
    s_add_u32 s11, s11, 0x400
    buffer_load_dwordx4 v2, {ST}, s10 offen lds
    s_add_u32 s10, s10, 0x2000
    s_sub_u32 s12, s12, 1
    s_cmp_lg_u32 s12, 0
    s_cbranch_scc1 L_dmawo
    s_branch L_round""")

E(".p2align 6")
L("L_pass")
def ex(base, a, b):
    for i in range(a, b): E(f"    v_exp_f32 v{base+i}, v{base+i}")
for j in range(8):
    jp, jn = (j + 7) & 7, (j + 1) & 7
    K = lambda s: f"v[{80+12*s}:{83+12*s}]"
    V0 = lambda s: f"v[{84+12*s}:{87+12*s}]"
    V1 = lambda s: f"v[{88+12*s}:{91+12*s}]"
    ex(0, 0, 3)
    E(f"    v_smfmac_f32_32x32x32_bf16 v[48:63], {V1(jp)}, v[24:31], {vIDX}")
    ex(0, 3, 8)
    E(f"    v_mfma_f32_32x32x16_bf16 v[16:31], {K(j)}, v[68:71], 0")
    if j & 1:
        E(f"    s_add_u32 {sSOFF}, {sSOFF}, {sSTEP if j == 1 else '0x1000'}")
    tile_loads(jp, not (j & 1))
    ex(0, 8, 13)
    E(f"    v_smfmac_f32_32x32x32_bf16 v[32:47], {V0(j)}, v[0:7], {vIDX}")
    ex(0, 13, 16)
    ex(16, 0, 3)
    E(f"    v_smfmac_f32_32x32x32_bf16 v[32:47], {V1(j)}, v[8:15], {vIDX}")
    ex(16, 3, 8)
    E("    s_waitcnt vmcnt(18)")
    E(f"    v_mfma_f32_32x32x16_bf16 v[0:15], {K(jn)}, v[64:67], 0")
    ex(16, 8, 13)
    E(f"    v_smfmac_f32_32x32x32_bf16 v[48:63], {V0(j)}, v[16:23], {vIDX}")
    ex(16, 13, 16)
E(f"    s_setpc_b64 {sRET}")

L("L_fallback")
E(f"""    s_cmp_eq_u32 s62, 0
    s_cselect_b64 vcc, -1, 0
    v_cndmask_b32 v188, v68, v64, vcc
    v_cndmask_b32 v189, v69, v65, vcc
    v_cndmask_b32 v190, v70, v66, vcc
    v_cndmask_b32 v191, v71, v67, vcc
    v_mov_b32 v32, 0xff800000
    s_lshl_b32 s10, {sHB}, 17
    s_mov_b32 s11, 64""")
L("L_fb1")
E(f"""    buffer_load_dwordx4 v[176:179], {vL16}, {SWS}, s10 offen sc1
    s_add_u32 s10, s10, 0x800
    s_waitcnt vmcnt(0)
    v_mfma_f32_32x32x16_bf16 v[0:15], v[176:179], v[188:191], 0
    s_nop 12""")
for i in range(0, 16, 2): E(f"    v_max3_f32 v32, v{i}, v{i+1}, v32")
E(f"""    s_sub_u32 s11, s11, 1
    s_cmp_lg_u32 s11, 0
    s_cbranch_scc1 L_fb1
    v_mov_b32 v33, v32
    s_nop 1
    v_permlane32_swap_b32 v32, v33
    s_nop 1
    v_max_f32 v32, v32, v33""")
for i in range(16): E(f"    v_xor_b32 v{16+i}, 0x80000000, v32")
for i in range(0, 16, 2): E(f"    v_mov_b64 v[{48+i}:{49+i}], 0")
E(f"""    s_lshl_b32 s10, {sHB}, 17
    s_mov_b32 s11, 64""")
L("L_fb2")
E(f"""    buffer_load_dwordx4 v[176:179], {vL16}, {SWS}, s10 offen sc1
    s_mov_b64 exec, {sVM}
    buffer_load_dwordx4 v[180:183], {vVA}, {SWS}, s10 offen offset:1024 sc1
    buffer_load_dwordx4 v[184:187], {vVA}, {SWS}, s10 offen offset:1536 sc1
    s_mov_b64 exec, -1
    s_add_u32 s10, s10, 0x800
    s_waitcnt vmcnt(0)
    v_mfma_f32_32x32x16_bf16 v[0:15], v[176:179], v[188:191], v[16:31]
    s_nop 12""")
ex(0, 0, 16)
E(f"""    s_nop 1
    v_smfmac_f32_32x32x32_bf16 v[48:63], v[180:183], v[0:7], {vIDX}
    v_smfmac_f32_32x32x32_bf16 v[48:63], v[184:187], v[8:15], {vIDX}
    s_sub_u32 s11, s11, 1
    s_cmp_lg_u32 s11, 0
    s_cbranch_scc1 L_fb2
    s_nop 12
    s_branch L_norm""")

L("L_fbar")
E(f"""    s_add_u32 {sBART}, {sBART}, 4
    v_mov_b32 {vT2}, {SY_BAR}
    v_mov_b32 {vT3}, 1
    s_waitcnt lgkmcnt(0)
    s_mov_b64 exec, 1
    ds_add_u32 {vT2}, {vT3}
    s_mov_b64 exec, -1
    s_mov_b32 {sSPIN}, 0""")
L("L_fbar1")
E(f"""    ds_read_b32 {vT3}, {vT2}
    s_add_u32 {sSPIN}, {sSPIN}, 1
    s_waitcnt lgkmcnt(0)
    v_readfirstlane_b32 s10, {vT3}
    s_cmp_ge_u32 s10, {sBART}
    s_cbranch_scc1 L_fbar2
    s_sleep 1
    s_cmp_lt_u32 {sSPIN}, 0x100000
    s_cbranch_scc1 L_fbar1""")
L("L_fbar2")
E(f"    s_setpc_b64 {sRET}")

L("L_attdone")
stamp(7)
E(f"""    s_cmp_ge_u32 {sW}, 4
    s_cbranch_scc1 L_exit
    s_waitcnt vmcnt(0)
    s_call_b64 {sRET}, L_fbar
    s_lshr_b32 s68, {sW}, 1               ; ct
    s_and_b32 s69, {sW}, 1                ; qt
    v_bfe_u32 v2, {vLANE}, 2, 2           ; r
    v_lshrrev_b32 v3, 5, {vLANE}          ; hh
    v_lshl_add_u32 v4, v3, 2, v2
    v_lshlrev_b32 v4, 7, v4               ; (4hh+r)*128
    v_lshrrev_b32 v2, 1, v2
    v_xor_b32 v2, s68, v2
    v_lshl_add_u32 v4, v2, 6, v4
    v_bfe_u32 v5, {vLANE}, 4, 1
    v_lshl_add_u32 v4, v5, 5, v4
    v_and_b32 v2, 1, {vLANE}
    v_lshl_add_u32 v4, v2, 4, v4
    v_bfe_u32 v2, {vLANE}, 1, 1
    v_lshl_add_u32 v4, v2, 3, v4
    v_add_u32 v4, {LG:#x}, v4""")
for h in range(32):
    E(f"""    ds_read_b64_tr_b16 v[{80+4*h}:{81+4*h}], v4 offset:{h*2048}
    ds_read_b64_tr_b16 v[{82+4*h}:{83+4*h}], v4 offset:{h*2048+1024}""")
E(f"""    s_cmp_ge_u32 s2, 43
    s_cbranch_scc1 L_nomoe
    s_call_b64 {sRET}, L_fbar
    ; ---------------- MoE: f block = wg id ----------------""")
srd(ST, 26, 512*2752)
srd(ST2, 28, 512*2752)
E(f"""    v_lshrrev_b32 v2, 2, {vLANE}
    v_and_b32 v3, 3, {vLANE}
    v_mul_u32_u24 v2, 2752, v2
    v_lshl_add_u32 v2, v3, 4, v2
    s_mul_i32 s10, {sW}, {128*2752}
    s_lshl_b32 s11, s2, 6
    s_add_u32 s10, s10, s11
    s_lshl_b32 s11, {sW}, 14
    s_add_u32 s11, s11, {LG:#x}
    s_mov_b32 s12, 8""")
L("L_dmagu")
E(f"""    s_mov_b32 m0, s11
    s_sub_u32 s12, s12, 1
    buffer_load_dwordx4 v2, {ST}, s10 offen lds
    s_add_u32 m0, s11, 0x2000
    s_add_u32 s11, s11, 0x400
    buffer_load_dwordx4 v2, {ST2}, s10 offen lds
    s_add_u32 s10, s10, {16*2752}
    s_cmp_lg_u32 s12, 0
    s_cbranch_scc1 L_dmagu""")
srd(ST, 30, 1376*1024)
E(f"""    v_lshrrev_b32 v2, 4, {vLANE}
    v_and_b32 v3, 15, {vLANE}
    v_lshlrev_b32 v3, 4, v3
    v_lshl_add_u32 v2, v2, 10, v3         ; 4 rows x 256B
    s_lshl_b32 s10, s2, 15
    s_lshl_b32 s11, {sW}, 8
    s_add_u32 s10, s10, s11
    s_lshl_b32 s11, {sW}, 13
    s_mov_b32 s12, 8""")
L("L_dmawd")
E(f"""    s_mov_b32 m0, s11
    s_add_u32 s11, s11, 0x400
    buffer_load_dwordx4 v2, {ST}, s10 offen lds
    s_add_u32 s10, s10, 0x1000
    s_sub_u32 s12, s12, 1
    s_cmp_lg_u32 s12, 0
    s_cbranch_scc1 L_dmawd
    s_lshl_b32 s10, {sW}, 12
    s_add_u32 s10, s10, {RG_OFF:#x}
    s_mov_b32 {sSPIN}, 0""")
L("L_keys")
for i in range(4):
    E(f"    buffer_load_dwordx4 v[{16+4*i}:{19+4*i}], {vL16}, {SWS}, s10 offen offset:{i*1024} sc1")
E(f"""    s_add_u32 {sSPIN}, {sSPIN}, 1
    s_waitcnt vmcnt(0)
    v_xor_b32 v17, {sTAG}, v17
    v_xor_b32 v21, {sTAG}, v21
    v_xor_b32 v25, {sTAG}, v25
    v_xor_b32 v29, {sTAG}, v29
    v_or3_b32 v17, v17, v21, v25
    v_or_b32 v17, v17, v29
    v_cmp_ne_u32 vcc, 0, v17
    s_cbranch_vccz L_keysok
    s_sleep 4
    s_cmp_lt_u32 {sSPIN}, {SPIN_MAX}
    s_cbranch_scc1 L_keys""")
L("L_keysok")
E(f"""    v_max3_u32 v16, v16, v20, v24
    v_max_u32 v16, v16, v28
    v_mov_b32 v17, {SY_KEY}
    ds_max_u32 v17, v16
    s_call_b64 {sRET}, L_fbar
    v_mov_b32 v17, {SY_KEY}
    ds_read_b32 v16, v17
    s_waitcnt lgkmcnt(0)
    v_readfirstlane_b32 s60, v16
    s_or_b32 s10, s2, {sW}
    s_cmp_lg_u32 s10, 0
    s_cbranch_scc1 L_nosel
    v_mov_b32 v17, {sTAG}
    v_mov_b32 v18, {SEL_OFF:#x}
    s_mov_b64 exec, 1
    buffer_store_dwordx2 v[16:17], v18, {SWS}, 0 offen sc1
    s_mov_b64 exec, -1""")
L("L_nosel")
E(f"""    s_and_b32 s10, s60, 0x7ff
    s_sub_u32 s10, 2047, s10              ; idx
    s_lshl_b32 s10, s10, 10
    s_lshl_b32 s11, {sW}, 8
    s_add_u32 s10, s10, s11
    v_lshrrev_b32 v3, 5, {vLANE}
    v_lshlrev_b32 v2, 4, v3""")
for ks in range(8):
    E(f"    buffer_load_dwordx4 v[{16+4*ks}:{19+4*ks}], v2, {SX}, s10 offen offset:{ks*32}")
E(f"""    v_bfe_u32 v2, {vLANE}, 2, 2
    v_lshl_add_u32 v2, v3, 3, v2          ; 8hh+r
    v_bfe_u32 v5, {vLANE}, 4, 1
    v_and_b32 v6, 3, {vLANE}
    v_lshlrev_b32 v6, 3, v6
    v_lshl_add_u32 v6, v5, 5, v6
    v_lshl_add_u32 v4, v2, 6, v6
    s_lshl_b32 s11, {sW}, 14
    s_add_u32 s11, s11, {LG:#x}
    v_add_u32 v4, s11, v4
    v_lshl_add_u32 v7, v2, 8, v6
    s_lshl_b32 s11, {sW}, 13
    v_add_u32 v7, s11, v7""")
zero_acc(48); zero_acc(64)
E("    s_waitcnt vmcnt(0)")
for half in range(2):
    for k4 in range(4):
        ks = half * 4 + k4
        for m in range(2):
            b = 208 + 8 * k4 + 4 * m
            E(f"""    ds_read_b64_tr_b16 v[{b}:{b+1}], v4 offset:{m*8192+ks*1024}
    ds_read_b64_tr_b16 v[{b+2}:{b+3}], v4 offset:{m*8192+ks*1024+256}""")
        if k4 == 1: E("    s_waitcnt lgkmcnt(0)")
    E("    s_waitcnt lgkmcnt(0)")
    for k4 in range(4):
        ks = half * 4 + k4
        for m in range(2):
            b = 208 + 8 * k4 + 4 * m
            a = 48 + 16 * m
            E(f"    v_mfma_f32_32x32x16_bf16 v[{a}:{a+15}], v[{16+4*ks}:{19+4*ks}], v[{b}:{b+3}], v[{a}:{a+15}]")
E(f"""    v_and_b32 v2, 31, {vLANE}
    v_lshlrev_b32 v2, 2, v2
    v_add_u32 v8, {MISC2}, v2
    s_lshl_b32 s11, {sW}, 8
    v_add_u32 v9, s11, v8
    s_nop 9
    ds_write_b32 v9, v48
    ds_write_b32 v9, v64 offset:128""")
for ct in range(4):
    for ks in range(2):
        b = 208 + 8 * ct + 4 * ks
        E(f"""    ds_read_b64_tr_b16 v[{b}:{b+1}], v7 offset:{ks*4096+ct*64}
    ds_read_b64_tr_b16 v[{b+2}:{b+3}], v7 offset:{ks*4096+ct*64+1024}""")
    if ct == 1: E("    s_waitcnt lgkmcnt(0)")
E(f"    s_call_b64 {sRET}, L_fbar")
for wv in range(4):
    E(f"    ds_read_b32 v{16+wv}, v8 offset:{wv*256}")
    E(f"    ds_read_b32 v{20+wv}, v8 offset:{wv*256+128}")
E(f"""    s_waitcnt lgkmcnt(0)
    v_add_f32 v16, v16, v17
    v_add_f32 v18, v18, v19
    v_add_f32 v20, v20, v21
    v_add_f32 v22, v22, v23
    v_add_f32 v16, v16, v18
    v_add_f32 v20, v20, v22               ; up
    v_cvt_pk_bf16_f32 v17, v16, v20
    s_mov_b32 s11, {LOG2E:#x}
    v_lshlrev_b32 v16, 16, v17
    v_and_b32 v20, 0xffff0000, v17
    v_mul_f32 v18, s11, v16
    v_exp_f32 v18, -v18
    s_nop 0
    v_add_f32 v18, 1.0, v18
    v_rcp_f32 v18, v18
    s_nop 0
    v_mul_f32 v18, v16, v18               ; silu
    v_cvt_pk_bf16_f32 v18, v18, v18
    v_lshlrev_b32 v18, 16, v18
    v_mul_f32 v18, v18, v20
    v_cvt_pk_bf16_f32 v18, v18, v18
    v_and_b32 v2, 31, {vLANE}
    s_lshl_b32 s11, {sW}, 6
    s_add_u32 s11, s11, {MISC2+1024}
    v_lshl_add_u32 v2, v2, 1, s11
    ds_write_b16 v2, v18
    v_lshrrev_b32 v3, 5, {vLANE}
    v_lshl_add_u32 v3, v3, 4, s11
    s_waitcnt lgkmcnt(0)
    ds_read_b128 v[16:19], v3
    ds_read_b128 v[20:23], v3 offset:32
    s_waitcnt lgkmcnt(0)""")
accs = [0, 32, 48, 64]
for ct in range(4):
    a = accs[ct]
    E(f"    v_mfma_f32_32x32x16_bf16 v[{a}:{a+15}], v[16:19], v[{208+8*ct}:{211+8*ct}], 0")
    E(f"    v_mfma_f32_32x32x16_bf16 v[{a}:{a+15}], v[20:23], v[{212+8*ct}:{215+8*ct}], v[{a}:{a+15}]")
E(f"""    v_cmp_gt_u32 vcc, 32, {vLANE}
    s_lshl_b32 s10, s2, 12
    s_lshl_b32 s11, {sW}, 10
    s_add_u32 s10, s10, s11
    s_add_u32 s10, s10, {YP_OFF:#x}
    v_lshlrev_b32 v28, 3, {vLANE}
    v_mov_b32 v25, {sTAG}
    v_mov_b32 v27, {sTAG}
    s_nop 6
    v_cndmask_b32 v24, v32, v0, vcc
    v_cndmask_b32 v26, v64, v48, vcc
    buffer_store_dwordx2 v[24:25], v28, {SWS}, s10 offen sc1
    buffer_store_dwordx2 v[26:27], v28, {SWS}, s10 offen offset:512 sc1""")
L("L_nomoe")
stamp(8)
zero_acc(0)
E(f"""    ; residual x: row 64b+32qt+(lane&31), cols 64c+32ct+8hh (+16)
    v_and_b32 v64, 31, {vLANE}
    v_lshrrev_b32 v65, 5, {vLANE}
    v_lshlrev_b32 v66, 4, v65
    v_lshl_add_u32 v66, v64, 10, v66
    s_lshl_b32 s63, {sB}, 16
    s_lshl_b32 s10, s69, 15
    s_add_u32 s63, s63, s10
    s_add_u32 s64, s63, {O_OFF:#x}
    s_lshl_b32 s10, {sC}, 7
    s_add_u32 s63, s63, s10
    s_lshl_b32 s10, s68, 6
    s_add_u32 s63, s63, s10
    buffer_load_dwordx4 v[208:211], v66, {SX}, s63 offen
    buffer_load_dwordx4 v[212:215], v66, {SX}, s63 offen offset:32
    s_lshl_b32 s10, {sB}, 12
    s_add_u32 s10, s10, {OFL_OFF:#x}
    v_lshlrev_b32 v67, 8, {vLANE}
    v_add_u32 v67, s10, v67""")
def batch(hoff):
    E(f"    v_add_u32 v68, {hoff*128}, v67")
    poll_dword("v68", vT0, "0xff", sleep=4)
    for i in range(8):
        h = hoff + 2 * i
        if i % 2 == 0:
            E(f"    s_add_u32 s10, s64, {h*1024}")
        E(f"    buffer_load_dwordx4 v[{16+4*i}:{19+4*i}], {vL16}, {SWS}, s10 offen offset:{(i%2)*2048} sc1")
    for i in range(8):
        h = hoff + 2 * i
        E(f"    s_waitcnt vmcnt({7-i})")
        E(f"    v_mfma_f32_32x32x16_bf16 v[0:15], v[{80+4*h}:{83+4*h}], v[{16+4*i}:{19+4*i}], v[0:15]")
E("    s_waitcnt lgkmcnt(0)")
batch(0)
batch(16)
batch(1)
stamp(9)
E(f"""    s_lshl_b32 s10, {sB}, 5
    s_lshl_b32 s11, s69, 4
    s_add_u32 s10, s10, s11
    v_lshrrev_b32 v69, 1, v64
    v_add_u32 v69, s10, v69
    v_lshlrev_b32 v69, 4, v69
    v_add_u32 v69, {RG_OFF+8:#x}, v69
    v_mov_b32 v70, {SEL_OFF:#x}
    s_mov_b32 {sSPIN}, 0""")
L("L_gsel")
E(f"""    buffer_load_dwordx2 v[72:73], v69, {SWS}, 0 offen sc1
    buffer_load_dwordx2 v[74:75], v70, {SWS}, 0 offen sc1
    s_add_u32 {sSPIN}, {sSPIN}, 1
    s_waitcnt vmcnt(0)
    v_cmp_ne_u32 vcc, {sTAG}, v73
    v_cmp_ne_u32 s[12:13], {sTAG}, v75
    s_or_b64 vcc, vcc, s[12:13]
    s_cbranch_vccz L_gselok
    s_sleep 4
    s_cmp_lt_u32 {sSPIN}, {SPIN_MAX}
    s_cbranch_scc1 L_gsel""")
L("L_gselok")
E(f"""    v_readfirstlane_b32 s60, v74
    v_and_b32 v71, 1, {vLANE}
    v_cmp_eq_u32 vcc, 1, v71
    v_lshlrev_b32 v76, 16, v72
    v_and_b32 v77, 0xffff0000, v72
    v_cndmask_b32 v76, v76, v77, vcc      ; g
    v_sub_f32 v77, 1.0, v76
    v_cvt_pk_bf16_f32 v77, v77, v77
    v_and_b32 v77, 0xffff0000, v77        ; bf16(1-g)""")
for i in range(8):
    E(f"    v_lshlrev_b32 v{48+2*i}, 16, v{208+i}")
    E(f"    v_and_b32 v{49+2*i}, 0xffff0000, v{208+i}")
E(f"""    s_and_b32 s10, s60, 0x7ff
    s_sub_u32 s61, 2047, s10              ; idx
    s_lshr_b32 s10, s61, 6
    s_cmp_lg_u32 s10, {sB}
    s_cbranch_scc1 L_noupd
    s_lshl_b32 s10, {sW}, 12
    s_lshl_b32 s11, {sC}, 9
    s_add_u32 s62, s10, s11
    s_add_u32 s62, s62, {YP_OFF:#x}
    v_lshlrev_b32 v78, 3, {vLANE}
    s_mov_b32 {sSPIN}, 0""")
L("L_ypoll")
E("    s_mov_b32 s10, s62")
for i in range(11):
    if i == 10:
        E(f"""    s_cmp_eq_u32 {sW}, 3
    s_cselect_b32 s10, s62, s10""")
    E(f"    buffer_load_dwordx2 v[{16+2*i}:{17+2*i}], v78, {SWS}, s10 offen sc1")
    E(f"    s_add_u32 s10, s10, 0x4000")
E(f"""    s_add_u32 {sSPIN}, {sSPIN}, 1
    v_mov_b32 v79, 0
    s_waitcnt vmcnt(0)""")
for i in range(11):
    E(f"    v_xor_b32 v{17+2*i}, {sTAG}, v{17+2*i}")
    E(f"    v_or_b32 v79, v79, v{17+2*i}")
E(f"""    v_cmp_ne_u32 vcc, 0, v79
    s_cbranch_vccz L_yok
    s_sleep 4
    s_cmp_lt_u32 {sSPIN}, {SPIN_MAX}
    s_cbranch_scc1 L_ypoll""")
L("L_yok")
E(f"""    s_cmp_eq_u32 {sW}, 3
    s_cselect_b64 vcc, -1, 0
    v_cndmask_b32 v36, v36, 0, vcc""")
for i in range(1, 11):
    E(f"    v_add_f32 v16, v16, v{16+2*i}")
E(f"""    v_lshlrev_b32 v17, 2, {vLANE}
    v_add_u32 v17, {MISC2+2048}, v17
    s_lshl_b32 s10, {sW}, 8
    v_add_u32 v18, s10, v17
    ds_write_b32 v18, v16
    s_call_b64 {sRET}, L_fbar
    ds_read_b32 v20, v17
    ds_read_b32 v21, v17 offset:256
    ds_read_b32 v22, v17 offset:512
    ds_read_b32 v23, v17 offset:768
    ; r_sel = bf16(sigmoid(r))
    s_and_b32 s10, s60, 0xffff0000
    s_ashr_i32 s11, s10, 31
    s_not_b32 s11, s11
    s_or_b32 s11, s11, 0x80000000
    s_xor_b32 s10, s10, s11
    s_and_b32 s10, s10, 0xffff0000
    v_mov_b32 v24, {LOG2E:#x}
    v_mul_f32 v24, s10, v24
    v_exp_f32 v24, -v24
    s_nop 0
    v_add_f32 v24, 1.0, v24
    v_rcp_f32 v24, v24
    s_nop 0
    v_cvt_pk_bf16_f32 v24, v24, v24
    v_and_b32 v24, 0xffff0000, v24
    s_waitcnt lgkmcnt(0)
    v_add_f32 v20, v20, v21
    v_add_f32 v22, v22, v23
    v_add_f32 v20, v20, v22
    v_cvt_pk_bf16_f32 v20, v20, v20
    v_and_b32 v20, 0xffff0000, v20
    v_mul_f32 v20, v20, v24
    v_cvt_pk_bf16_f32 v20, v20, v20
    v_and_b32 v20, 0xffff0000, v20
    ds_write_b32 v18, v20 offset:1024
    s_lshl_b32 s10, {sW}, 8
    s_lshl_b32 s11, s68, 7
    s_add_u32 s10, s10, s11
    s_add_u32 s10, s10, {MISC2+3072}
    v_lshl_add_u32 v19, v65, 5, s10
    s_waitcnt lgkmcnt(0)
    ds_read_b128 v[16:19], v19 offset:0
    """.rstrip())
out[-1] = "    v_mov_b32 v79, v19"
E(f"""    ds_read_b128 v[16:19], v79
    ds_read_b128 v[20:23], v79 offset:16
    ds_read_b128 v[24:27], v79 offset:64
    ds_read_b128 v[28:31], v79 offset:80
    s_and_b32 s10, s61, 63
    s_lshl_b32 s11, s69, 5
    s_sub_u32 s10, s10, s11
    v_cmp_eq_u32 vcc, s10, v64
    s_waitcnt lgkmcnt(0)""")
for i in range(16):
    E(f"    v_cndmask_b32 v{16+i}, 0, v{16+i}, vcc")
    E(f"    v_add_f32 v{48+i}, v{48+i}, v{16+i}")
for i in range(8):
    E(f"    v_cvt_pk_bf16_f32 v{16+i}, v{48+2*i}, v{49+2*i}")
for i in range(8):
    E(f"    v_lshlrev_b32 v{48+2*i}, 16, v{16+i}")
    E(f"    v_and_b32 v{49+2*i}, 0xffff0000, v{16+i}")
L("L_noupd")
for i in range(16):
    E(f"    v_mul_f32 v{48+i}, v77, v{48+i}")
srd(ST, 34, 0x200000)
stamp(10)
batch(17)
E("    s_nop 11")
for i in range(16):
    E(f"    v_fma_f32 v{i}, v{i}, v76, v{48+i}")
for i in range(8):
    E(f"    v_cvt_pk_bf16_f32 v{16+i}, v{2*i}, v{2*i+1}")
E(f"""    buffer_store_dwordx4 v[16:19], v66, {ST}, s63 offen
    buffer_store_dwordx4 v[20:23], v66, {ST}, s63 offen offset:32""")
L("L_exit")
if DIAG:
    stamp(11)
    E(f"""    s_memrealtime s[84:85]
    s_waitcnt lgkmcnt(0)
    v_writelane_b32 v247, s84, 12
    s_lshl_b32 s10, s2, 3
    s_add_u32 s10, s10, {sW}
    s_lshl_b32 s10, s10, 6
    s_add_u32 s10, s10, {STAMP_OFF:#x}
    v_lshlrev_b32 v2, 2, {vLANE}
    s_mov_b64 exec, 0xffff
    buffer_store_dword v247, v2, {SWS}, s10 offen""")
L("L_end")
E(f"""    s_endpgm
.section .rodata,"a"
.p2align 6
.amdhsa_kernel {NAME}
  .amdhsa_next_free_vgpr 256
  .amdhsa_next_free_sgpr 102
  .amdhsa_accum_offset 256
  .amdhsa_group_segment_fixed_size 0
  .amdhsa_kernarg_size 96
  .amdhsa_user_sgpr_count 2
  .amdhsa_user_sgpr_kernarg_segment_ptr 1
  .amdhsa_system_sgpr_workgroup_id_x 1
.end_amdhsa_kernel""")

txt = "\n".join(out) + "\n"
txt = txt.replace("v_mul_u32_u24 v14, 0xc00, v2", "v_mul_u32_u24 v60, 0xc00, v2").replace(
    "v_lshl_add_u32 v14, v3, 4, v14", "v_lshl_add_u32 v60, v3, 4, v60").replace(
    "buffer_load_dwordx4 v14,", "buffer_load_dwordx4 v60,")
dst = [a for a in sys.argv[1:] if not a.startswith("--")]
open(dst[0] if dst else "gated_mix__mha_block__moe_arch_mod__prompt.s", "w").write(txt)
```

```python
import sys, struct

NAME = "gated_mix__mha_block__moe_arch_mod__prompt_kernel"
DIAG = "--diag" in sys.argv
FORCE_FB = "--forcefb" in sys.argv
def opt(name, default):
    for a in sys.argv:
        if a.startswith(f"--{name}="): return a.split("=", 1)[1]
    return default
PRIOS = [int(c) for c in opt("prios", "332210")]
PREFETCH = int(opt("pf", "1"))

KV_OFF, O_OFF = 0, 0x400000
FL_OFF, OFL_OFF, RG_OFF, SEL_OFF, YP_OFF, PA_OFF = 0x800000, 0x810000, 0x830000, 0x834000, 0x838000, 0x868000
STAMP_OFF = 0x900000
WS_SIZE = 0xA00000
OOB = 0x4000000
LX, LG, SCR = 0, 65536, 131072
LQX = SCR
LACC = SCR + 8192
ACC_SZ = 4608
SYNC = LACC + 4 * ACC_SZ
MISC = SYNC + 256
LMOE = LG + 32768
SY_RED = SYNC
SY_FIN = SYNC + 16
SY_KV0 = SYNC + 32
SY_KV1 = SYNC + 36
SY_Q1 = SYNC + 40
SY_Q2 = SYNC + 44
SY_G2L = SYNC + 48
SY_G2D = SYNC + 52
SY_WQ2 = SYNC + 56
SY_WO = SYNC + 60
SY_KVOK = SYNC + 64

def f2u(x): return struct.unpack("<I", struct.pack("<f", x))[0]
QSCALE = f2u(0.25 * 1.4426950408889634)
LOG2E = f2u(1.4426950408889634)

out = []
def E(s=""):
    for ln in s.split("\n"):
        out.append(ln)
def L(name): out.append(name + ":")

sW, sG, sTY, sB, sC, sROT, sTAG, sHW = "s3", "s4", "s5", "s6", "s7", "s8", "s9", "s15"
SX, SWQ, SWS, ST, ST2 = "s[40:43]", "s[44:47]", "s[48:51]", "s[52:55]", "s[56:59]"
sVM = "s[70:71]"
sSOFF, sSTEP3, sSTEP5, sIT, sSPIN, sHB, sRND = "s72", "s73", "s74", "s75", "s76", "s77", "s78"
sRET, sRET2 = "s[80:81]", "s[82:83]"
sWA, sWN = "s88", "s89"
vLANE, vL16, vIDX, vVA = "v167", "v166", "v165", "v164"
vT0, vT1, vT2, vT3 = "v160", "v161", "v162", "v163"
vSTAMP = "v159"
vFL = "v158"

def stamp(i):
    if not DIAG: return
    E(f"""    s_memtime s[84:85]
    s_memrealtime s[86:87]
    s_waitcnt lgkmcnt(0)
    v_writelane_b32 {vSTAMP}, s84, {i}
    v_writelane_b32 {vSTAMP}, s86, {16+i}""")

def srd(reg, plo, size):
    n = int(reg[2:reg.index(":")])
    E(f"""    s_mov_b32 s{n}, s{plo}
    s_mov_b32 s{n+1}, s{plo+1}
    s_mov_b32 s{n+2}, {size:#x}
    s_mov_b32 s{n+3}, 0x20000""")

SPIN_MAX = 40000
lab = [0]
def newlab(p="L"):
    lab[0] += 1
    return f"{p}_{lab[0]}"

def poll_dword(vaddr, vdst, execmask=None, sleep=2):
    l0, l1 = newlab("poll"), newlab("polldone")
    if execmask: E(f"    s_mov_b64 exec, {execmask}")
    E(f"    s_mov_b32 {sSPIN}, 0")
    L(l0)
    E(f"""    buffer_load_dword {vdst}, {vaddr}, {SWS}, 0 offen sc1
    s_add_u32 {sSPIN}, {sSPIN}, 1
    s_waitcnt vmcnt(0)
    v_cmp_ne_u32 vcc, {sTAG}, {vdst}
    s_cbranch_vccz {l1}
    s_sleep {sleep}
    s_cmp_lt_u32 {sSPIN}, {SPIN_MAX}
    s_cbranch_scc1 {l0}""")
    L(l1)
    if execmask: E("    s_mov_b64 exec, -1")

def signal(addr):
    E(f"""    v_mov_b32 {vT2}, {addr}
    v_mov_b32 {vT3}, 1
    s_mov_b64 exec, 1
    ds_add_u32 {vT2}, {vT3}
    s_mov_b64 exec, -1""")
def lwait(addr, n):
    E(f"""    s_mov_b32 {sWA}, {addr}
    s_mov_b32 {sWN}, {n}
    s_call_b64 {sRET}, L_lwait""")
def get_tag():
    l0, l1 = newlab("tag"), newlab("tagok")
    srd(ST, 36, 256)
    E(f"""    v_mov_b32 {vT1}, 0
    s_mov_b32 {sSPIN}, 0""")
    L(l0)
    E(f"""    buffer_load_dword {vT0}, {vT1}, {ST}, 0 offen sc0 sc1
    s_add_u32 {sSPIN}, {sSPIN}, 1
    s_waitcnt vmcnt(0)
    v_readfirstlane_b32 {sTAG}, {vT0}
    s_cmp_ge_u32 {sSPIN}, {SPIN_MAX}
    s_cbranch_scc1 {l1}
    s_cmp_eq_u32 {sTAG}, 0
    s_cbranch_scc1 {l0}""")
    L(l1)
def publish_flag_last(counter, s_addr):
    l = newlab("nofl")
    E(f"""    v_mov_b32 {vT2}, {counter}
    v_mov_b32 {vT3}, 1
    v_mov_b32 {vT0}, {sTAG}
    v_mov_b32 {vT1}, {s_addr}
    s_mov_b64 exec, 1
    ds_add_rtn_u32 {vT3}, {vT2}, {vT3}
    s_waitcnt lgkmcnt(0)
    v_cmp_eq_u32 vcc, 3, {vT3}
    s_cbranch_vccz {l}
    buffer_store_dword {vT0}, {vT1}, {SWS}, 0 offen sc1""")
    L(l)
    E("    s_mov_b64 exec, -1")
def zero_acc(base=0):
    for i in range(0, 16, 2):
        E(f"    v_mov_b64 v[{base+i}:{base+i+1}], 0")
def xaddr_setup():
    E(f"""    v_and_b32 v2, 31, {vLANE}
    v_lshrrev_b32 v3, 5, {vLANE}
    v_bfe_u32 v4, {vLANE}, 1, 3
    v_xor_b32 v4, v4, v3
    v_lshlrev_b32 v4, 4, v4
    v_lshl_add_u32 v80, v2, 7, v4
    s_and_b32 s11, {sHW}, 1
    s_lshl_b32 s11, s11, 12
    v_add_u32 v80, s11, v80
    v_xor_b32 v81, 32, v80
    v_xor_b32 v82, 64, v80
    v_xor_b32 v83, 0x60, v80""")
def gaddr_setup():
    E(f"""    s_lshr_b32 s68, {sHW}, 1
    v_bfe_u32 v2, {vLANE}, 2, 2
    v_lshrrev_b32 v3, 5, {vLANE}
    v_lshl_add_u32 v4, v3, 3, v2
    v_lshlrev_b32 v4, 7, v4
    v_lshrrev_b32 v2, 1, v2
    v_xor_b32 v2, s68, v2
    v_lshl_add_u32 v4, v2, 6, v4
    v_bfe_u32 v5, {vLANE}, 4, 1
    v_lshl_add_u32 v4, v5, 5, v4
    v_and_b32 v2, 3, {vLANE}
    v_lshl_add_u32 v4, v2, 3, v4
    v_add_u32 v84, {LG:#x}, v4
    v_and_b32 v2, 0x33, {vLANE}
    v_bfe_u32 v4, {vLANE}, 2, 1
    v_lshl_or_b32 v2, v4, 3, v2
    v_bfe_u32 v4, {vLANE}, 3, 1
    v_lshl_or_b32 v2, v4, 2, v2
    v_lshlrev_b32 v85, 4, v2
    v_and_b32 v2, 15, {vLANE}
    v_lshlrev_b32 v2, 4, v2
    v_lshl_add_u32 v2, v3, 8, v2
    v_lshl_add_u32 v4, v5, 17, v2
    v_add_u32 v4, 0x400, v4
    s_cmp_eq_u32 {sTY}, 1
    s_cselect_b64 vcc, -1, 0
    s_movk_i32 s67, 0x200
    s_cselect_b32 s67, s67, 0x20000
    v_cndmask_b32 v85, v85, v4, vcc
    s_lshl_b32 s66, {sG}, 1
    s_add_u32 s66, s66, s68
    s_lshl_b32 s66, s66, 18
    s_lshl_b32 s11, {sB}, 1
    s_and_b32 s12, {sHW}, 1
    s_add_u32 s11, s11, s12
    s_lshl_b32 s11, s11, 11
    s_add_u32 s66, s66, s11
    s_lshl_b32 s65, {sC}, 5
    s_add_u32 s65, s65, {sB}
    s_lshl_b32 s65, s65, 7
    s_add_u32 s65, s65, {FL_OFF:#x}""")
def qaddr_setup():
    E(f"""    v_bfe_u32 v2, {vLANE}, 2, 2
    v_lshrrev_b32 v3, 5, {vLANE}
    v_lshl_add_u32 v2, v3, 3, v2
    v_lshlrev_b32 v2, 6, v2
    v_bfe_u32 v3, {vLANE}, 4, 1
    v_lshl_add_u32 v2, v3, 5, v2
    v_and_b32 v3, 3, {vLANE}
    v_lshl_add_u32 v2, v3, 3, v2
    v_add_u32 v84, {LG:#x}, v2""")
def kv_store():
    for i in range(8):
        E(f"    v_cvt_pk_bf16_f32 v{16+i}, v{2*i}, v{2*i+1}")
    E(f"""    s_add_u32 s11, s66, s67
    buffer_store_dwordx4 v[16:19], v85, {SWS}, s66 offen sc1
    buffer_store_dwordx4 v[20:23], v85, {SWS}, s11 offen sc1""")

E(f"""; fused gated-mix(MHA, top-1 MoD FFN): QKV GEMM -> attention -> out-proj + mix in one launch
; @launch grid=(256,1,1) block=(768,1,1) lds=163840
.amdgcn_target "amdgcn-amd-amdhsa--gfx950"
.text
.globl {NAME}
.p2align 8
.type {NAME},@function
{NAME}:
    s_load_dwordx16 s[16:31], s[0:1], 0
    s_load_dwordx8 s[32:39], s[0:1], 64
    s_cmp_ge_u32 s2, 256
    s_cbranch_scc1 L_end
    v_lshrrev_b32 v1, 6, v0
    v_and_b32 {vLANE}, 63, v0
    s_lshr_b32 s11, s2, 3                ; slot
    s_bfe_u32 {sG}, s2, 0x20001          ; (wg>>1)&3
    v_readfirstlane_b32 {sW}, v1
    s_and_b32 {sTY}, s11, 1
    s_and_b32 s12, s2, 1
    s_lshl_b32 s12, s12, 4
    s_lshr_b32 s13, s11, 1
    s_or_b32 {sB}, s12, s13
    s_lshl_b32 s12, {sTY}, 2
    s_add_u32 {sROT}, s13, s12
    s_and_b32 {sROT}, {sROT}, 7
    s_and_b32 {sHW}, {sW}, 3""")
if DIAG:
    E(f"    v_mov_b32 {vSTAMP}, 0")
    stamp(0)
E(f"""    s_cmp_ge_u32 {sW}, 4
    s_cbranch_scc1 L_FR""")

E(f"""    s_setprio 3
    v_lshrrev_b32 v2, 3, {vLANE}
    v_and_b32 v3, 7, {vLANE}
    v_lshrrev_b32 v4, 4, {vLANE}
    v_xor_b32 v5, v3, v4
    v_lshlrev_b32 v5, 4, v5
    v_lshl_add_u32 v90, v2, 10, v5        ; x even
    v_xor_b32 v91, 64, v90
    v_add_u32 v91, 0x2000, v91            ; x odd
    v_and_b32 v4, 1, v4
    v_lshlrev_b32 v4, 2, v4
    v_xor_b32 v5, v3, v4
    v_lshlrev_b32 v95, 4, v5
    v_mov_b32 v6, 0xc00
    v_mad_u32_u24 v92, v2, v6, v95        ; g even
    v_add_u32 v93, 0x6000, v92            ; g odd
    s_lshl_b32 s60, {sB}, 16
    s_lshl_b32 s61, {sW}, 14
    s_add_u32 s60, s60, s61
    s_lshl_b32 s61, {sTY}, 10
    s_lshl_b32 s62, {sG}, 7
    s_add_u32 s61, s61, s62
    s_mul_i32 s63, {sW}, 0xc000
    s_add_u32 s64, s61, s63
    s_add_u32 s64, s64, 0x400
    s_lshl_b32 s69, {sW}, 11
    s_mov_b32 s14, {sROT}
    s_mov_b32 s10, 0
    s_mov_b32 s42, 0x200000
    s_mov_b32 s43, 0x20000
    s_mov_b32 s46, 0x180000
    s_mov_b32 s47, 0x20000
    s_waitcnt lgkmcnt(0)
    s_mov_b64 s[40:41], s[16:17]
    s_mov_b64 s[44:45], s[18:19]""")
L("L_dma1")
E(f"""    s_lshl_b32 s11, s14, 7
    s_add_u32 s11, s11, s60
    s_mul_i32 s12, s14, 0x30000
    s_add_u32 s12, s12, s64
    s_mov_b32 m0, s69
    s_add_u32 s14, s14, 1
    buffer_load_dwordx4 v90, {SX}, s11 offen lds
    s_add_u32 m0, s69, 0x400
    s_and_b32 s14, s14, 7
    buffer_load_dwordx4 v91, {SX}, s11 offen lds
    s_add_u32 m0, s69, {LG:#x}
    s_add_u32 s10, s10, 1
    buffer_load_dwordx4 v92, {SWQ}, s12 offen lds
    s_add_u32 m0, s69, {LG+0x400:#x}
    s_add_u32 s69, s69, 0x2000
    buffer_load_dwordx4 v93, {SWQ}, s12 offen lds
    s_cmp_lt_u32 s10, 4
    s_cbranch_scc1 L_dma1
    s_waitcnt vmcnt(12)
    s_barrier
    s_cmp_lt_u32 s10, 8
    s_cbranch_scc1 L_dma1
    v_lshrrev_b32 v2, 2, {vLANE}
    v_and_b32 v3, 3, {vLANE}
    v_lshlrev_b32 v3, 4, v3
    v_mad_u32_u24 v94, v2, v6, v3
    s_lshl_b32 s61, {sTY}, 6
    s_add_u32 s61, s61, s62
    s_add_u32 s79, s61, s63
    s_lshl_b32 s69, {sW}, 10
    s_add_u32 s69, s69, {LG:#x}
    s_mov_b32 s10, 0""")
L("L_dmaq")
E(f"""    s_mul_i32 s12, s14, 0x30000
    s_add_u32 s12, s12, s79
    s_mov_b32 m0, s69
    s_add_u32 s14, s14, 1
    s_and_b32 s14, s14, 7
    buffer_load_dwordx4 v94, {SWQ}, s12 offen lds
    s_add_u32 s69, s69, 0x1000
    s_add_u32 s10, s10, 1
    s_and_b32 s11, s10, 3
    s_cbranch_scc1 L_dmaq
    s_waitcnt vmcnt(12)
    s_barrier
    s_cmp_lt_u32 s10, 8
    s_cbranch_scc1 L_dmaq
    s_waitcnt vmcnt(8)
    s_barrier
    s_lshl_b32 {sC}, {sG}, 1
    s_or_b32 {sC}, {sC}, {sTY}
    v_lshlrev_b32 {vL16}, 4, {vLANE}""")
srd(SWS, 38, WS_SIZE)
xaddr_setup()
gaddr_setup()
E(f"""    s_add_u32 s66, s66, 0x200000
    s_add_u32 s65, s65, 0x8000
    s_add_u32 s64, s64, 0x200
    s_add_u32 s79, s79, 0x200
    s_waitcnt vmcnt(0)
    s_barrier                             ; barrier A""")
stamp(1)
E(f"""    s_xor_b32 s14, s14, 4
    s_lshl_b32 s69, {sW}, 11
    s_add_u32 s69, s69, {LG+0x8000:#x}
    s_mov_b32 s10, 0""")
L("L_dmag2")
E(f"""    s_mul_i32 s12, s14, 0x30000
    s_add_u32 s12, s12, s64
    s_mov_b32 m0, s69
    s_add_u32 s14, s14, 1
    s_and_b32 s14, s14, 7
    buffer_load_dwordx4 v92, {SWQ}, s12 offen lds
    s_add_u32 m0, s69, 0x400
    s_add_u32 s69, s69, 0x2000
    s_add_u32 s10, s10, 1
    buffer_load_dwordx4 v93, {SWQ}, s12 offen lds
    s_and_b32 s11, s10, 3
    s_cbranch_scc1 L_dmag2
    s_cmp_eq_u32 s10, 8
    s_cbranch_scc1 L_g2issued""")
lwait(SY_Q1, 2)
E(f"""    s_sub_u32 s69, s69, 0x10000
    s_branch L_dmag2""")
L("L_g2issued")
E(f"    s_xor_b32 s14, s14, 4")
get_tag()
signal(SY_G2L)
lwait(SY_G2L, 4)
stamp(2)
E(f"""    s_cmp_eq_u32 {sTY}, 1
    s_cbranch_scc1 L_g2V
    s_call_b64 {sRET}, L_pgemmK
    s_branch L_g2E""")
L("L_g2V")
E(f"    s_call_b64 {sRET}, L_pgemmV")
L("L_g2E")
kv_store()
signal(SY_G2D)
lwait(SY_G2D, 4)
E(f"""    s_lshl_b32 s69, {sW}, 10
    s_add_u32 s69, s69, {LG:#x}
    s_mov_b32 s10, 0
    s_waitcnt vmcnt(0)""")
publish_flag_last(SY_KV1, "s65")
L("L_dmaq2")
E(f"""    s_mul_i32 s12, s14, 0x30000
    s_add_u32 s12, s12, s79
    s_mov_b32 m0, s69
    s_add_u32 s14, s14, 1
    s_and_b32 s14, s14, 7
    buffer_load_dwordx4 v94, {SWQ}, s12 offen lds
    s_add_u32 s69, s69, 0x1000
    s_add_u32 s10, s10, 1
    s_cmp_lt_u32 s10, 8
    s_cbranch_scc1 L_dmaq2
    s_waitcnt vmcnt(0)""")
signal(SY_WQ2)
stamp(3)
E(f"""    s_cmp_eq_u32 {sW}, 2
    s_cbranch_scc1 L_moe
    s_cmp_eq_u32 {sW}, 3
    s_cbranch_scc1 L_h3""")
xaddr_setup()
qaddr_setup()
lwait(SY_WQ2, 4)
E(f"""    s_lshl_b32 s11, {sW}, 10
    s_add_u32 s11, s11, {LQX+4096}
    v_add_u32 v86, s11, {vL16}
    s_call_b64 {sRET2}, L_qtile""")
signal(SY_Q2)
lwait(SY_Q2, 2)
srd(ST, 20, 0x80000)
E(f"""    v_lshrrev_b32 v2, 3, {vLANE}
    v_lshl_add_u32 v2, v2, 10, v95
    s_lshl_b32 s10, {sW}, 18
    s_lshl_b32 s11, {sC}, 7
    s_add_u32 s10, s10, s11
    s_lshl_b32 s11, {sW}, 15
    s_mov_b32 s12, 32""")
L("L_dmawo")
E(f"""    s_mov_b32 m0, s11
    s_add_u32 s11, s11, 0x400
    buffer_load_dwordx4 v2, {ST}, s10 offen lds
    s_add_u32 s10, s10, 0x2000
    s_sub_u32 s12, s12, 1
    s_waitcnt vmcnt(3)
    s_cmp_lg_u32 s12, 0
    s_cbranch_scc1 L_dmawo
    s_waitcnt vmcnt(0)""")
signal(SY_WO)
E("    s_branch L_outproj")
L("L_h3")
E(f"""    s_lshl_b32 s11, {sG}, 13
    s_add_u32 s11, s11, {FL_OFF+0x8000:#x}
    v_lshlrev_b32 v2, 7, {vLANE}
    v_add_u32 v2, s11, v2""")
poll_dword("v2", "v3", None, sleep=8)
signal(SY_KVOK)
E("    s_branch L_outproj")

L("L_moe")
E(f"""    v_bfe_u32 v2, {vLANE}, 2, 2
    v_lshrrev_b32 v3, 5, {vLANE}
    v_lshl_add_u32 v100, v3, 3, v2        ; 8hh+r
    v_bfe_u32 v5, {vLANE}, 4, 1
    v_and_b32 v6, 3, {vLANE}
    v_lshlrev_b32 v6, 3, v6
    v_lshl_add_u32 v101, v5, 5, v6
    v_lshlrev_b32 v102, 4, v3             ; hh*16
    v_lshlrev_b32 v103, 3, {vLANE}        ; lane*8
    s_cmp_lt_u32 s2, 172
    s_cbranch_scc1 L_moeA
    s_cmp_lt_u32 s2, 215
    s_cbranch_scc1 L_moeB
    s_cmp_lg_u32 s2, 255
    s_cbranch_scc1 L_outproj
    ; ---- argmax over the router keys ----
    s_mov_b32 {sSPIN}, 0""")
L("L_keys")
E(f"    s_mov_b32 s10, {RG_OFF:#x}")
for i in range(16):
    E(f"    buffer_load_dwordx2 v[{16+2*i}:{17+2*i}], {vL16}, {SWS}, s10 offen offset:{(i%4)*1024} sc1")
    if i % 4 == 3: E("    s_add_u32 s10, s10, 0x1000")
E(f"""    s_add_u32 {sSPIN}, {sSPIN}, 1
    v_mov_b32 v2, 0
    v_mov_b32 v3, 0
    s_waitcnt vmcnt(0)""")
for i in range(16):
    E(f"""    v_xor_b32 v{17+2*i}, {sTAG}, v{17+2*i}
    v_max_u32 v2, v2, v{16+2*i}
    v_or_b32 v3, v3, v{17+2*i}""")
E(f"""    v_cmp_ne_u32 vcc, 0, v3
    s_cbranch_vccz L_keysok
    s_sleep 8
    s_cmp_lt_u32 {sSPIN}, {SPIN_MAX}
    s_cbranch_scc1 L_keys""")
L("L_keysok")
for dpp in ("quad_perm:[1,0,3,2] row_mask:0xf bank_mask:0xf", "quad_perm:[2,3,0,1] row_mask:0xf bank_mask:0xf",
            "row_half_mirror row_mask:0xf bank_mask:0xf", "row_mirror row_mask:0xf bank_mask:0xf",
            "row_bcast:15 row_mask:0xa bank_mask:0xf", "row_bcast:31 row_mask:0xc bank_mask:0xf"):
    E(f"    s_nop 1\n    v_max_u32_dpp v2, v2, v2 {dpp}")
E(f"""    v_mov_b32 v3, {sTAG}
    v_mov_b32 v4, {SEL_OFF:#x}
    s_mov_b32 exec_lo, 0
    s_mov_b32 exec_hi, 0x80000000
    buffer_store_dwordx2 v[2:3], v4, {SWS}, 0 offen sc1
    s_mov_b64 exec, -1
    s_branch L_outproj""")
L("L_moeA")
srd(ST, 26, 512*2752)
srd(ST2, 28, 512*2752)
E(f"""    s_mul_i32 s60, s2, 1525
    s_lshr_b32 s60, s60, 16
    s_mul_i32 s11, s60, 43
    s_sub_u32 s61, s2, s11                ; fb
    v_lshrrev_b32 v2, 2, {vLANE}
    v_and_b32 v3, 3, {vLANE}
    v_mul_u32_u24 v2, 2752, v2
    v_lshl_add_u32 v2, v3, 4, v2
    s_mul_i32 s10, s60, {128*2752}
    s_lshl_b32 s11, s61, 6
    s_add_u32 s10, s10, s11
    s_mov_b32 s11, {LMOE}
    s_mov_b32 s12, 8""")
L("L_dmagu")
E(f"""    s_mov_b32 m0, s11
    s_sub_u32 s12, s12, 1
    buffer_load_dwordx4 v2, {ST}, s10 offen lds
    s_add_u32 m0, s11, 0x2000
    s_add_u32 s11, s11, 0x400
    buffer_load_dwordx4 v2, {ST2}, s10 offen lds
    s_add_u32 s10, s10, {16*2752}
    s_waitcnt vmcnt(2)
    s_cmp_lg_u32 s12, 0
    s_cbranch_scc1 L_dmagu
    v_mov_b32 v4, {SEL_OFF:#x}
    s_mov_b32 {sSPIN}, 0""")
L("L_selA")
E(f"""    buffer_load_dwordx2 v[2:3], v4, {SWS}, 0 offen sc1
    s_add_u32 {sSPIN}, {sSPIN}, 1
    s_waitcnt vmcnt(0)
    v_cmp_ne_u32 vcc, {sTAG}, v3
    s_cbranch_vccz L_selAok
    s_sleep 8
    s_cmp_lt_u32 {sSPIN}, {SPIN_MAX}
    s_cbranch_scc1 L_selA""")
L("L_selAok")
E(f"""    v_readfirstlane_b32 s10, v2
    s_and_b32 s10, s10, 0x7ff
    s_sub_u32 s10, 2047, s10
    s_lshl_b32 s10, s10, 10
    s_lshl_b32 s11, s60, 8
    s_add_u32 s10, s10, s11""")
for ks in range(8):
    E(f"    buffer_load_dwordx4 v[{32+4*ks}:{35+4*ks}], v102, {SX}, s10 offen offset:{ks*32}")
E(f"""    v_lshl_add_u32 v4, v100, 6, v101
    v_add_u32 v104, {LMOE}, v4""")
zero_acc(0); zero_acc(16)
for half in range(2):
    for k4 in range(4):
        ks = half * 4 + k4
        for m in range(2):
            b = 64 + 8 * k4 + 4 * m
            E(f"""    ds_read_b64_tr_b16 v[{b}:{b+1}], v104 offset:{m*8192+ks*1024}
    ds_read_b64_tr_b16 v[{b+2}:{b+3}], v104 offset:{m*8192+ks*1024+256}""")
    E("    s_waitcnt vmcnt(0) lgkmcnt(0)")
    for k4 in range(4):
        ks = half * 4 + k4
        for m in range(2):
            b = 64 + 8 * k4 + 4 * m
            a = 16 * m
            E(f"    v_mfma_f32_32x32x16_bf16 v[{a}:{a+15}], v[{32+4*ks}:{35+4*ks}], v[{b}:{b+3}], v[{a}:{a+15}]")
E(f"""    v_cmp_gt_u32 vcc, 32, {vLANE}
    s_lshl_b32 s10, s61, 2
    s_add_u32 s10, s10, s60
    s_lshl_b32 s10, s10, 9
    s_add_u32 s10, s10, {PA_OFF:#x}
    v_mov_b32 v33, {sTAG}
    s_nop 7
    v_cndmask_b32 v32, v16, v0, vcc
    buffer_store_dwordx2 v[32:33], v103, {SWS}, s10 offen sc1
    s_branch L_outproj""")
L("L_moeB")
srd(ST, 30, 1376*1024)
E(f"""    s_sub_u32 s61, s2, 172
    s_lshl_b32 s10, s61, 15
    s_mov_b32 s11, {LMOE}
    s_mov_b32 s12, 32""")
L("L_dmawd")
E(f"""    s_mov_b32 m0, s11
    s_add_u32 s11, s11, 0x400
    buffer_load_dwordx4 {vL16}, {ST}, s10 offen lds
    s_add_u32 s10, s10, 0x400
    s_sub_u32 s12, s12, 1
    s_waitcnt vmcnt(7)
    s_cmp_lg_u32 s12, 0
    s_cbranch_scc1 L_dmawd
    s_lshl_b32 s10, s61, 11
    s_add_u32 s10, s10, {PA_OFF:#x}
    s_mov_b32 {sSPIN}, 0""")
L("L_pa")
for i in range(4):
    E(f"    buffer_load_dwordx2 v[{2*i}:{2*i+1}], v103, {SWS}, s10 offen offset:{i*512} sc1")
E(f"""    s_add_u32 {sSPIN}, {sSPIN}, 1
    s_waitcnt vmcnt(0)
    v_xor_b32 v1, {sTAG}, v1
    v_xor_b32 v3, {sTAG}, v3
    v_xor_b32 v5, {sTAG}, v5
    v_xor_b32 v7, {sTAG}, v7
    v_or3_b32 v1, v1, v3, v5
    v_or_b32 v1, v1, v7
    v_cmp_ne_u32 vcc, 0, v1
    s_cbranch_vccz L_paok
    s_sleep 16
    s_cmp_lt_u32 {sSPIN}, {SPIN_MAX}
    s_cbranch_scc1 L_pa""")
L("L_paok")
E(f"""    v_add_f32 v0, v0, v2
    v_add_f32 v4, v4, v6
    v_add_f32 v0, v0, v4
    v_mov_b32 v1, v0
    s_nop 1
    v_permlane32_swap_b32 v0, v1
    s_nop 1
    v_cvt_pk_bf16_f32 v2, v0, v1
    s_mov_b32 s11, {LOG2E:#x}
    v_lshlrev_b32 v0, 16, v2
    v_and_b32 v1, 0xffff0000, v2
    v_mul_f32 v3, s11, v0
    v_exp_f32 v3, -v3
    s_nop 0
    v_add_f32 v3, 1.0, v3
    v_rcp_f32 v3, v3
    s_nop 0
    v_mul_f32 v3, v0, v3
    v_cvt_pk_bf16_f32 v3, v3, v3
    v_lshlrev_b32 v3, 16, v3
    v_mul_f32 v3, v3, v1
    v_cvt_pk_bf16_f32 v3, v3, v3
    v_and_b32 v2, 31, {vLANE}
    v_lshlrev_b32 v2, 1, v2
    v_add_u32 v2, {MISC+2048}, v2
    ds_write_b16 v2, v3
    v_add_u32 v2, {MISC+2048}, v102
    v_lshl_add_u32 v104, v100, 10, v101
    v_add_u32 v104, {LMOE}, v104
    s_waitcnt lgkmcnt(0)
    ds_read_b128 v[32:35], v2
    ds_read_b128 v[36:39], v2 offset:32
    v_cmp_gt_u32 vcc, 32, {vLANE}
    v_mov_b32 v41, {sTAG}
    s_lshl_b32 s10, s61, 12
    s_add_u32 s10, s10, {YP_OFF:#x}
    s_mov_b32 s12, 8""")
L("L_down")
for ct in range(2):
    for ks in range(2):
        b = 64 + 8 * ct + 4 * ks
        E(f"""    ds_read_b64_tr_b16 v[{b}:{b+1}], v104 offset:{ks*16384+ct*64}
    ds_read_b64_tr_b16 v[{b+2}:{b+3}], v104 offset:{ks*16384+ct*64+4096}""")
E(f"""    v_add_u32 v104, 128, v104
    s_waitcnt lgkmcnt(0)
    v_mfma_f32_32x32x16_bf16 v[0:15], v[32:35], v[64:67], 0
    v_mfma_f32_32x32x16_bf16 v[16:31], v[32:35], v[72:75], 0
    v_mfma_f32_32x32x16_bf16 v[0:15], v[36:39], v[68:71], v[0:15]
    v_mfma_f32_32x32x16_bf16 v[16:31], v[36:39], v[76:79], v[16:31]
    s_nop 12
    v_cndmask_b32 v40, v16, v0, vcc
    buffer_store_dwordx2 v[40:41], v103, {SWS}, s10 offen sc1
    s_add_u32 s10, s10, 0x200
    s_sub_u32 s12, s12, 1
    s_cmp_lg_u32 s12, 0
    s_cbranch_scc1 L_down""")

L("L_outproj")
stamp(4)
E(f"""    s_lshr_b32 s68, {sW}, 1               ; ct
    s_and_b32 s69, {sW}, 1                ; qt
    v_bfe_u32 v98, {vLANE}, 2, 2
    v_lshrrev_b32 v97, 5, {vLANE}         ; hh
    v_lshl_add_u32 v99, v97, 2, v98
    v_lshlrev_b32 v99, 7, v99
    v_lshrrev_b32 v98, 1, v98
    v_xor_b32 v98, s68, v98
    v_lshl_add_u32 v99, v98, 6, v99
    v_bfe_u32 v98, {vLANE}, 4, 1
    v_lshl_add_u32 v99, v98, 5, v99
    v_and_b32 v98, 1, {vLANE}
    v_lshl_add_u32 v99, v98, 4, v99
    v_bfe_u32 v98, {vLANE}, 1, 1
    v_lshl_add_u32 v99, v98, 3, v99
    v_and_b32 v96, 31, {vLANE}
    v_lshlrev_b32 v100, 4, v97
    v_lshl_add_u32 v100, v96, 10, v100
    s_lshl_b32 s63, {sB}, 16
    s_lshl_b32 s10, s69, 15
    s_add_u32 s63, s63, s10
    s_add_u32 s64, s63, {O_OFF:#x}
    s_lshl_b32 s10, {sC}, 7
    s_add_u32 s63, s63, s10
    s_lshl_b32 s10, s68, 6
    s_add_u32 s63, s63, s10
    buffer_load_dwordx4 v[104:107], v100, {SX}, s63 offen
    buffer_load_dwordx4 v[108:111], v100, {SX}, s63 offen offset:32
    s_lshl_b32 s10, {sB}, 12
    s_add_u32 s10, s10, {OFL_OFF:#x}
    v_lshlrev_b32 v101, 8, {vLANE}
    v_add_u32 v101, s10, v101
    s_lshl_b32 s10, {sB}, 5
    s_lshl_b32 s11, s69, 4
    s_add_u32 s10, s10, s11
    v_lshrrev_b32 v112, 1, v96
    v_add_u32 v112, s10, v112
    v_lshlrev_b32 v112, 4, v112
    v_add_u32 v112, {RG_OFF+8:#x}, v112
    v_mov_b32 v113, {SEL_OFF:#x}
    s_mov_b32 {sSPIN}, 0""")
L("L_gsel")
E(f"""    buffer_load_dwordx2 v[114:115], v112, {SWS}, 0 offen sc1
    buffer_load_dwordx2 v[116:117], v113, {SWS}, 0 offen sc1
    s_add_u32 {sSPIN}, {sSPIN}, 1
    s_waitcnt vmcnt(0)
    v_cmp_ne_u32 vcc, {sTAG}, v115
    v_cmp_ne_u32 s[12:13], {sTAG}, v117
    s_or_b64 vcc, vcc, s[12:13]
    s_cbranch_vccz L_gselok
    s_sleep 16
    s_cmp_lt_u32 {sSPIN}, {SPIN_MAX}
    s_cbranch_scc1 L_gsel""")
L("L_gselok")
E(f"""    v_readfirstlane_b32 s60, v116
    v_and_b32 v98, 1, {vLANE}
    v_cmp_eq_u32 vcc, 1, v98
    v_lshlrev_b32 v118, 16, v114
    v_and_b32 v119, 0xffff0000, v114
    v_cndmask_b32 v118, v118, v119, vcc   ; g
    v_sub_f32 v119, 1.0, v118
    v_cvt_pk_bf16_f32 v119, v119, v119
    v_and_b32 v119, 0xffff0000, v119      ; bf16(1-g)""")
for i in range(8):
    E(f"    v_lshlrev_b32 v{80+2*i}, 16, v{104+i}")
    E(f"    v_and_b32 v{81+2*i}, 0xffff0000, v{104+i}")
zero_acc(0)
lwait(SY_WO, 2)
E("    s_mov_b32 s62, 0                      ; batch")
L("L_batch")
E(f"""    s_and_b32 s10, s62, 1
    s_lshr_b32 s11, s62, 1
    s_lshl_b32 s12, s11, 4
    s_add_u32 s61, s10, s12
    s_lshl_b32 s12, s61, 11
    v_add_u32 v102, s12, v99""")
for i in range(8):
    E(f"""    ds_read_b64_tr_b16 v[{48+4*i}:{49+4*i}], v102 offset:{i*4096}
    ds_read_b64_tr_b16 v[{50+4*i}:{51+4*i}], v102 offset:{i*4096+1024}""")
E(f"""    s_lshl_b32 s12, s61, 7
    v_add_u32 v103, s12, v101
    s_lshl_b32 s10, s10, 1
    s_add_u32 s10, s10, s11
    s_lshl_b32 s10, s10, 2
    s_add_u32 {sWA}, s10, {SY_FIN}
    s_mov_b32 {sWN}, 1
    s_call_b64 {sRET}, L_lwait""")
poll_dword("v103", vT0, "0xff", sleep=2)
E(f"""    s_lshl_b32 s10, s61, 10
    s_add_u32 s10, s10, s64""")
for i in range(8):
    E(f"    buffer_load_dwordx4 v[{16+4*i}:{19+4*i}], {vL16}, {SWS}, s10 offen offset:{(i%2)*2048} sc1")
    if i % 2 == 1 and i < 7: E("    s_add_u32 s10, s10, 0x1000")
for i in range(8):
    E(f"    s_waitcnt vmcnt({7-i})")
    E(f"    v_mfma_f32_32x32x16_bf16 v[0:15], v[{48+4*i}:{51+4*i}], v[{16+4*i}:{19+4*i}], v[0:15]")
E(f"""    s_add_u32 s62, s62, 1
    s_cmp_eq_u32 s62, 4
    s_cbranch_scc1 L_final
    s_cmp_lg_u32 s62, 2
    s_cbranch_scc1 L_batch""")
stamp(5)
E(f"""    s_and_b32 s10, s60, 0x7ff
    s_sub_u32 s14, 2047, s10              ; idx
    s_lshr_b32 s10, s14, 5
    s_lshl_b32 s11, {sB}, 1
    s_add_u32 s11, s11, s69
    s_cmp_lg_u32 s10, s11
    s_cbranch_scc1 L_noupd
    s_lshl_b32 s10, {sC}, 9
    s_lshl_b32 s11, s68, 8
    s_add_u32 s13, s10, s11
    s_add_u32 s13, s13, {YP_OFF:#x}
    v_mul_u32_u24 v120, {21*4096}, v97
    v_lshl_add_u32 v120, v96, 3, v120
    s_mov_b32 {sSPIN}, 0""")
L("L_ypoll")
E("    s_mov_b32 s10, s13")
for i in range(22):
    E(f"    buffer_load_dwordx2 v[{16+2*i}:{17+2*i}], v120, {SWS}, s10 offen sc1")
    E(f"    s_add_u32 s10, s10, 0x1000")
E(f"""    s_add_u32 {sSPIN}, {sSPIN}, 1
    v_mov_b32 v121, 0
    s_waitcnt vmcnt(0)""")
for i in range(22):
    E(f"    v_xor_b32 v{17+2*i}, {sTAG}, v{17+2*i}")
    E(f"    v_or_b32 v121, v121, v{17+2*i}")
E(f"""    v_cmp_ne_u32 vcc, 0, v121
    s_cbranch_vccz L_yok
    s_sleep 16
    s_cmp_lt_u32 {sSPIN}, {SPIN_MAX}
    s_cbranch_scc1 L_ypoll""")
L("L_yok")
E(f"""    v_cmp_gt_u32 vcc, 32, {vLANE}
    s_nop 1
    v_cndmask_b32 v16, 0, v16, vcc""")
for i in range(1, 22):
    E(f"    v_add_f32 v16, v16, v{16+2*i}")
E(f"""    v_mov_b32 v17, v16
    s_and_b32 s10, s60, 0xffff0000
    s_ashr_i32 s11, s10, 31
    v_permlane32_swap_b32 v16, v17
    s_not_b32 s11, s11
    s_or_b32 s11, s11, 0x80000000
    s_xor_b32 s10, s10, s11
    s_and_b32 s10, s10, 0xffff0000
    v_mov_b32 v24, {LOG2E:#x}
    v_mul_f32 v24, s10, v24
    v_exp_f32 v24, -v24
    v_add_f32 v20, v16, v17
    v_add_f32 v24, 1.0, v24
    v_rcp_f32 v24, v24
    v_cvt_pk_bf16_f32 v20, v20, v20
    v_cvt_pk_bf16_f32 v24, v24, v24
    v_and_b32 v24, 0xffff0000, v24
    v_and_b32 v20, 0xffff0000, v20
    v_mul_f32 v20, v20, v24
    v_cvt_pk_bf16_f32 v20, v20, v20
    v_and_b32 v20, 0xffff0000, v20
    s_lshl_b32 s10, {sW}, 10
    s_add_u32 s10, s10, {MISC}
    v_lshl_add_u32 v21, v96, 2, s10
    v_lshl_add_u32 v121, v97, 5, s10
    ds_write_b32 v21, v20
    s_waitcnt lgkmcnt(0)
    ds_read_b128 v[16:19], v121
    ds_read_b128 v[20:23], v121 offset:16
    ds_read_b128 v[24:27], v121 offset:64
    ds_read_b128 v[28:31], v121 offset:80
    s_and_b32 s10, s14, 31
    v_cmp_eq_u32 vcc, s10, v96
    s_nop 0
    s_waitcnt lgkmcnt(0)""")
for i in range(16):
    E(f"    v_cndmask_b32 v{16+i}, 0, v{16+i}, vcc")
    E(f"    v_add_f32 v{80+i}, v{80+i}, v{16+i}")
for i in range(8):
    E(f"    v_cvt_pk_bf16_f32 v{16+i}, v{80+2*i}, v{81+2*i}")
for i in range(8):
    E(f"    v_lshlrev_b32 v{80+2*i}, 16, v{16+i}")
    E(f"    v_and_b32 v{81+2*i}, 0xffff0000, v{16+i}")
L("L_noupd")
for i in range(16):
    E(f"    v_mul_f32 v{80+i}, v119, v{80+i}")
stamp(6)
E("    s_branch L_batch")
L("L_final")
srd(ST, 34, 0x200000)
E("    s_nop 4")
for i in range(16):
    E(f"    v_fma_f32 v{i}, v{i}, v118, v{80+i}")
for i in range(8):
    E(f"    v_cvt_pk_bf16_f32 v{16+i}, v{2*i}, v{2*i+1}")
E(f"""    buffer_store_dwordx4 v[16:19], v100, {ST}, s63 offen
    buffer_store_dwordx4 v[20:23], v100, {ST}, s63 offen offset:32
    s_branch L_exit""")

L("L_lwait")
E(f"""    v_mov_b32 {vT2}, {sWA}
    s_mov_b32 {sSPIN}, 0""")
L("L_lwait1")
E(f"""    ds_read_b32 {vT3}, {vT2}
    s_add_u32 {sSPIN}, {sSPIN}, 1
    s_waitcnt lgkmcnt(0)
    v_cmp_le_u32 vcc, {sWN}, {vT3}
    s_cbranch_vccnz L_lwait2
    s_sleep 2
    s_cmp_lt_u32 {sSPIN}, 0x80000
    s_cbranch_scc1 L_lwait1""")
L("L_lwait2")
E(f"    s_setpc_b64 {sRET}")

def reads(kind, buf, coff=0):
    ks_s, h_s = (1024, 256) if kind == "Q" else (2048, 512)
    wo = coff // 2 if kind == "Q" else coff
    for ks in range(4):
        b = 16 + 32 * buf
        E(f"""    ds_read_b128 v[{b+4*ks}:{b+3+4*ks}], v{80+ks} offset:{coff}
    ds_read_b64_tr_b16 v[{b+16+4*ks}:{b+17+4*ks}], v84 offset:{wo+ks*ks_s}
    ds_read_b64_tr_b16 v[{b+18+4*ks}:{b+19+4*ks}], v84 offset:{wo+ks*ks_s+h_s}""")
def mm(kind, buf, ks):
    b = 16 + 32 * buf
    x, w = f"v[{b+4*ks}:{b+3+4*ks}]", f"v[{b+16+4*ks}:{b+19+4*ks}]"
    if kind == "V": E(f"    v_mfma_f32_32x32x16_bf16 v[0:15], {x}, {w}, v[0:15]")
    else: E(f"    v_mfma_f32_32x32x16_bf16 v[0:15], {w}, {x}, v[0:15]")
def adv(kind, n):
    for ks in range(4): E(f"    v_add_u32 v{80+ks}, {n*0x2000:#x}, v{80+ks}")
    E(f"    v_add_u32 v84, {n*(0x1000 if kind == 'Q' else 0x2000):#x}, v84")
def bgemm(label, kind):
    L(label)
    E("    s_mov_b32 s60, 8")
    L(label + "_l")
    E("    s_barrier")
    reads(kind, 0)
    adv(kind, 1)
    E("    s_sub_u32 s60, s60, 1")
    for ks in range(4):
        E(f"    s_waitcnt lgkmcnt({9-3*ks})")
        mm(kind, 0, ks)
    E(f"""    s_cmp_lg_u32 s60, 0
    s_cbranch_scc1 {label}_l""")
def pgemm(label, kind):
    L(label)
    zero_acc()
    reads(kind, 0)
    E("    s_mov_b32 s60, 4")
    L(label + "_l")
    E("    s_waitcnt lgkmcnt(0)")
    reads(kind, 1, 0x2000)
    adv(kind, 2)
    for ks in range(4): mm(kind, 0, ks)
    E("    s_waitcnt lgkmcnt(0)")
    reads(kind, 0)
    E("    s_sub_u32 s60, s60, 1")
    for ks in range(4): mm(kind, 1, ks)
    E(f"""    s_cmp_lg_u32 s60, 0
    s_cbranch_scc1 {label}_l
    s_waitcnt lgkmcnt(0)
    s_nop 8
    s_setpc_b64 {sRET}""")
pgemm("L_pgemmK", "K")
pgemm("L_pgemmV", "V")
L("L_qtile")
E(f"    s_call_b64 {sRET}, L_pgemmQ")
E(f"    s_mov_b32 s11, {QSCALE:#x}")
for i in range(16):
    E(f"    v_mul_f32 v{i}, s11, v{i}")
for i in range(8):
    E(f"    v_cvt_pk_bf16_f32 v{16+i}, v{2*i}, v{2*i+1}")
E(f"""    ds_write_b128 v86, v[16:19]
    ds_write_b128 v86, v[20:23] offset:2048
    s_waitcnt lgkmcnt(0)
    s_setpc_b64 {sRET2}""")
pgemm("L_pgemmQ", "Q")

L("L_FR")
E(f"""    s_lshl_b32 {sC}, {sG}, 1
    s_or_b32 {sC}, {sC}, {sTY}
    v_lshlrev_b32 {vL16}, 4, {vLANE}""")
xaddr_setup()
E(f"""    s_cmp_ge_u32 {sW}, 8
    s_cbranch_scc1 L_R""")
gaddr_setup()
zero_acc()
E("    s_waitcnt lgkmcnt(0)")
srd(SWS, 38, WS_SIZE)
E(f"""    s_cmp_eq_u32 {sTY}, 1
    s_cbranch_scc1 L_bgemmV""")
bgemm("L_bgemmK", "K")
E("    s_branch L_genE")
bgemm("L_bgemmV", "V")
L("L_genE")
E("    s_nop 9")
kv_store()
stamp(1)
E("    s_barrier                             ; barrier A")
get_tag()
publish_flag_last(SY_KV0, "s65")
stamp(2)
E("    s_branch L_att")

L("L_R")
if PREFETCH:
    E(f"""    s_getpc_b64 s[60:61]
L_pcref:
    s_sub_u32 s60, s60, L_pcref-{NAME}
    s_subb_u32 s61, s61, 0
    s_lshr_b32 s11, s2, 3
    s_lshl_b32 s11, s11, 2
    s_add_u32 s11, s11, {sHW}
    s_lshl_b32 s11, s11, 7
    s_min_u32 s11, s11, L_end-{NAME}
    v_mov_b32 v2, s11
    s_mov_b64 exec, 1
    global_load_dword v110, v2, s[60:61]
    s_mov_b64 exec, -1""")
E(f"""    v_mov_b32 v4, 0
    v_lshlrev_b32 v8, 2, {vLANE}
    v_add_u32 v8, {SYNC}, v8
    ds_write_b32 v8, v4""")
qaddr_setup()
E(f"""    v_lshrrev_b32 v2, 3, {vLANE}
    v_add_u32 v4, {sROT}, v2
    v_and_b32 v4, 7, v4
    v_and_b32 v5, 7, {vLANE}
    v_lshlrev_b32 v6, 4, v5
    v_lshl_add_u32 v87, v4, 7, v6
    s_lshl_b32 s11, {sC}, 2
    s_add_u32 s11, s11, {sHW}
    s_and_b32 s12, s11, 7
    v_xor_b32 v5, s12, v5
    v_lshlrev_b32 v5, 4, v5
    v_lshl_add_u32 v5, v2, 13, v5
    s_lshl_b32 s11, s11, 8
    v_add_u32 v88, s11, v5
    s_lshl_b32 s11, {sHW}, 10
    s_add_u32 s11, s11, {LQX}
    v_add_u32 v86, s11, {vL16}
    s_waitcnt lgkmcnt(0)""")
srd(SWS, 38, WS_SIZE)
srd(ST, 36, 256)
E(f"""    s_xor_b32 s11, {sW}, 8
    s_or_b32 s11, s11, s2
    s_cmp_lg_u32 s11, 0
    s_cbranch_scc1 L_noepoch
    s_memrealtime s[12:13]
    v_mov_b32 v3, 0
    s_waitcnt lgkmcnt(0)
    s_or_b32 s12, s12, 1
    v_mov_b32 v2, s12
    s_mov_b64 exec, 1
    buffer_store_dword v2, v3, {ST}, 0 offen sc0 sc1
    s_mov_b64 exec, -1""")
L("L_noepoch")
srd(ST, 24, 1024)
srd(ST2, 32, 1024)
E(f"""    buffer_load_dwordx4 v[92:95], v87, {ST}, 0 offen
    buffer_load_dwordx4 v[96:99], v87, {ST2}, 0 offen""")
for i in range(8): E("    s_barrier")
E(f"""    ds_read_b128 v[100:103], v88
    ds_read_b128 v[104:107], v88 offset:128
    s_waitcnt lgkmcnt(0)
    s_barrier                             ; barrier A
    s_cmp_ge_u32 {sHW}, 2
    s_cbranch_scc1 L_noq1
    s_call_b64 {sRET2}, L_qtile""")
signal(SY_Q1)
L("L_noq1")
stamp(1)
get_tag()
E("    s_waitcnt lgkmcnt(0)")
for j in range(4): E(f"    v_mov_b32 v{32+j}, 0")
for q in range(4):
    for j, (xr, wr) in enumerate(((100, 92), (100, 96), (104, 92), (104, 96))):
        E(f"    v_dot2_f32_bf16 v{32+j}, v{xr+q}, v{wr+q}, v{32+j}")
E("    s_nop 2")
for dpp in ("quad_perm:[1,0,3,2] row_mask:0xf bank_mask:0xf", "quad_perm:[2,3,0,1] row_mask:0xf bank_mask:0xf",
            "row_half_mirror row_mask:0xf bank_mask:0xf", "row_mirror row_mask:0xf bank_mask:0xf",
            "row_bcast:15 row_mask:0xa bank_mask:0xf", "row_bcast:31 row_mask:0xc bank_mask:0xf"):
    for j in range(4):
        E(f"    v_add_f32_dpp v{32+j}, v{32+j}, v{32+j} {dpp}")
E(f"""    v_cvt_pk_bf16_f32 v36, v32, v34
    v_cvt_pk_bf16_f32 v37, v33, v35
    s_mov_b32 s11, {LOG2E:#x}
    v_lshlrev_b32 v38, 16, v37
    v_and_b32 v39, 0xffff0000, v37
    v_mul_f32 v38, s11, v38
    v_mul_f32 v39, s11, v39
    v_exp_f32 v38, -v38
    v_exp_f32 v39, -v39
    v_lshlrev_b32 v40, 16, v36
    v_and_b32 v41, 0xffff0000, v36
    v_add_f32 v38, 1.0, v38
    v_add_f32 v39, 1.0, v39
    v_rcp_f32 v38, v38
    v_rcp_f32 v39, v39
    v_ashrrev_i32 v42, 31, v40
    v_ashrrev_i32 v43, 31, v41
    v_cvt_pk_bf16_f32 v46, v38, v39
    v_or_b32 v42, 0x80000000, v42
    v_or_b32 v43, 0x80000000, v43
    v_xor_b32 v40, v40, v42
    v_xor_b32 v41, v41, v43
    v_and_b32 v40, 0xffff0000, v40
    v_and_b32 v41, 0xffff0000, v41
    s_lshl_b32 s11, {sB}, 5
    s_lshl_b32 s12, {sC}, 2
    s_add_u32 s11, s11, s12
    s_add_u32 s11, s11, {sHW}
    s_lshl_b32 s12, s11, 1
    s_sub_u32 s12, 2047, s12
    s_sub_u32 s13, s12, 1
    v_or_b32 v40, s12, v40
    v_or_b32 v41, s13, v41
    v_max_u32 v44, v40, v41
    v_mov_b32 v45, {sTAG}
    v_mov_b32 v47, {sTAG}
    s_lshl_b32 s11, s11, 4
    s_add_u32 s11, s11, {RG_OFF:#x}
    v_mov_b32 v3, s11
    s_mov_b32 exec_lo, 0
    s_mov_b32 exec_hi, 0x80000000
    buffer_store_dwordx4 v[44:47], v3, {SWS}, 0 offen sc1
    s_mov_b64 exec, -1""")
stamp(2)

RB = 72
def K(s): return f"v[{RB+12*s}:{RB+3+12*s}]"
def V0(s): return f"v[{RB+4+12*s}:{RB+7+12*s}]"
def V1(s): return f"v[{RB+8+12*s}:{RB+11+12*s}]"
L("L_att")
E(f"""    s_lshr_b32 s14, {sW}, 3               ; hs
    s_lshl_b32 s10, {sC}, 1
    s_add_u32 {sHB}, s10, s14
    s_lshl_b32 {sSOFF}, {sHB}, 17
    s_lshl_b32 s12, {sHW}, 15
    s_add_u32 {sSOFF}, {sSOFF}, s12
    s_mov_b32 s70, 0xffff
    s_mov_b32 s71, 0xffff
    v_mov_b32 {vIDX}, 0xdddddddd
    v_lshrrev_b32 v2, 5, {vLANE}
    v_and_b32 v3, 15, {vLANE}
    v_lshlrev_b32 v3, 4, v3
    v_lshl_add_u32 {vVA}, v2, 8, v3
    v_and_b32 v2, 7, {vLANE}
    v_bfe_u32 v3, {vLANE}, 3, 1
    v_lshl_add_u32 v2, v3, 5, v2
    s_lshl_b32 s12, {sG}, 6
    s_lshl_b32 s13, {sHW}, 3
    s_add_u32 s12, s12, s13
    v_add_u32 v2, s12, v2
    v_lshlrev_b32 v2, 7, v2
    v_add_u32 {vFL}, {FL_OFF:#x}, v2
    v_and_b32 v2, 31, {vLANE}
    v_cmp_eq_u32 vcc, 16, v2
    v_mov_b32 v2, 0x3f803f80
    s_lshl_b32 s10, s14, 11
    s_add_u32 s10, s10, {LQX}
    v_cndmask_b32 v156, 0, v2, vcc
    v_add_u32 v155, s10, {vL16}
    v_mov_b32 v157, v156""")
for j in range(6):
    for r in range(4, 12, 2):
        E(f"    v_mov_b64 v[{RB+12*j+r}:{RB+12*j+r+1}], v[156:157]")
lwait(SY_Q1, 2)
E(f"""    ds_read_b128 v[64:67], v155
    ds_read_b128 v[68:71], v155 offset:1024""")
poll_dword(vFL, vT0, "0xffff")
stamp(3)
def tile_loads(slot, odd):
    b = RB + 12 * slot
    o = 2048 if odd else 0
    E(f"""    buffer_load_dwordx4 v[{b}:{b+3}], {vL16}, {SWS}, {sSOFF} offen offset:{o} sc1
    s_mov_b64 exec, {sVM}
    buffer_load_dwordx4 v[{b+4}:{b+7}], {vVA}, {SWS}, {sSOFF} offen offset:{o+1024} sc1
    buffer_load_dwordx4 v[{b+8}:{b+11}], {vVA}, {SWS}, {sSOFF} offen offset:{o+1536} sc1
    s_mov_b64 exec, -1""")
for t in range(5):
    if t and t % 2 == 0:
        E(f"    s_add_u32 {sSOFF}, {sSOFF}, 0x1000")
    tile_loads(t, t & 1)
def round_init():
    for i in range(0, 10, 2):
        E(f"    v_mov_b64 v[{32+i}:{33+i}], 0")
        E(f"    v_mov_b64 v[{48+i}:{49+i}], 0")
    for i in range(24, 32, 2):
        E(f"    v_mov_b64 v[{i}:{i+1}], 0")
for i in range(10, 16, 2):
    E(f"    v_mov_b64 v[{32+i}:{33+i}], 0")
    E(f"    v_mov_b64 v[{48+i}:{49+i}], 0")
round_init()
E(f"""    s_mov_b32 {sRND}, 0
    s_mov_b32 {sIT}, 0
    s_mov_b32 {sSTEP3}, 0x1000
    s_mov_b32 {sSTEP5}, 0x1000
    s_setprio {PRIOS[0]}
    s_waitcnt vmcnt(12) lgkmcnt(0)
    v_mfma_f32_32x32x16_bf16 v[0:15], {K(0)}, v[64:67], 0""")
stamp(4)
E("    s_nop 11")
E(".p2align 6")
L("L_loop")
def ex(base, a, b):
    for i in range(a, b): E(f"    v_exp_f32 v{base+i}, v{base+i}")
for j in range(6):
    jp, jn = (j + 5) % 6, (j + 1) % 6
    if j == 4: L("L_pos4")
    ex(0, 0, 3)
    E(f"    v_smfmac_f32_32x32x32_bf16 v[48:63], {V1(jp)}, v[24:31], {vIDX}")
    ex(0, 3, 8)
    E(f"    v_mfma_f32_32x32x16_bf16 v[16:31], {K(j)}, v[68:71], 0")
    if j & 1:
        E(f"    s_add_u32 {sSOFF}, {sSOFF}, { {1: '0x1000', 3: sSTEP3, 5: sSTEP5}[j] }")
    tile_loads(jp, not (j & 1))
    ex(0, 8, 13)
    E(f"    v_smfmac_f32_32x32x32_bf16 v[32:47], {V0(j)}, v[0:7], {vIDX}")
    ex(0, 13, 16)
    ex(16, 0, 3)
    E(f"    v_smfmac_f32_32x32x32_bf16 v[32:47], {V1(j)}, v[8:15], {vIDX}")
    ex(16, 3, 8)
    E("    s_waitcnt vmcnt(12)")
    E(f"    v_mfma_f32_32x32x16_bf16 v[0:15], {K(jn)}, v[64:67], 0")
    ex(16, 8, 13)
    E(f"    v_smfmac_f32_32x32x32_bf16 v[48:63], {V0(j)}, v[16:23], {vIDX}")
    ex(16, 13, 16)
    if j == 1:
        E(f"    s_cmp_eq_u32 {sIT}, 5\n    s_cbranch_scc1 L_end1")
    if j == 3:
        E(f"    s_cmp_eq_u32 {sIT}, 2\n    s_cbranch_scc1 L_end0")
E(f"""    s_add_u32 {sIT}, {sIT}, 1
    s_mov_b32 {sSTEP5}, 0x1000
    s_cmp_eq_u32 {sIT}, 4
    s_cselect_b32 {sSTEP3}, {OOB:#x}, {sSTEP5}""")
for it in range(2, 6):
    if PRIOS[it] != PRIOS[it-1]:
        l = newlab("pr")
        E(f"    s_cmp_lg_u32 {sIT}, {it}\n    s_cbranch_scc1 {l}\n    s_setprio {PRIOS[it]}\n    s_branch L_loop")
        L(l)
E(f"""    s_cmp_lg_u32 {sIT}, 1
    s_cbranch_scc1 L_loop
    s_setprio {PRIOS[1]}""")
lwait(SY_KVOK, 1)
E(f"""    s_mov_b32 {sSTEP5}, {16*0x20000 - 0x7000:#x}
    s_branch L_loop""")
L("L_end0")
E(f"""    v_smfmac_f32_32x32x32_bf16 v[48:63], {V1(3)}, v[24:31], {vIDX}
    s_branch L_rend""")
L("L_end1")
E(f"    v_smfmac_f32_32x32x32_bf16 v[48:63], {V1(1)}, v[24:31], {vIDX}")
L("L_rend")
E(f"""    s_lshl_b32 s69, s14, 3
    s_add_u32 s10, s69, {SY_FIN}
    s_cmp_eq_u32 {sRND}, 0
    s_cselect_b32 {sWA}, {SY_Q2}, s10
    s_cselect_b32 {sWN}, 2, 1
    s_call_b64 {sRET}, L_lwait
    s_lshl_b32 s10, {sRND}, 2
    s_add_u32 s69, s69, s10
    s_cmp_eq_u32 s14, 0
    s_mov_b32 s79, {LG}
    s_cselect_b32 s79, {LACC}, s79
    s_mul_i32 s11, {sHW}, {ACC_SZ}
    s_add_u32 s11, s11, s79
    v_add_u32 {vT0}, s11, {vL16}
    v_lshl_add_u32 {vT1}, {vLANE}, 2, s11
    s_add_u32 s10, s69, {SY_RED}
    v_mov_b32 {vT2}, s10
    v_mov_b32 {vT3}, 1
    ds_write_b128 {vT0}, v[32:35]
    ds_write_b128 {vT0}, v[36:39] offset:1024
    ds_write_b32 {vT1}, v40 offset:2048
    ds_write_b128 {vT0}, v[48:51] offset:2304
    ds_write_b128 {vT0}, v[52:55] offset:3328
    ds_write_b32 {vT1}, v56 offset:4352
    s_waitcnt lgkmcnt(0)
    s_mov_b64 exec, 1
    ds_add_rtn_u32 {vT3}, {vT2}, {vT3}
    s_mov_b64 exec, -1
    v_add_u32 {vT0}, s79, {vL16}
    v_and_b32 {vT1}, 31, {vLANE}
    v_lshl_add_u32 {vT1}, {vT1}, 2, s79
    s_lshl_b32 s61, {sB}, 16
    s_lshl_b32 s10, {sHB}, 10
    s_add_u32 s61, s61, s10
    s_add_u32 s61, s61, {O_OFF:#x}
    s_mov_b32 s62, 0
    s_waitcnt lgkmcnt(0)
    v_readfirstlane_b32 s10, {vT3}
    s_cmp_lg_u32 s10, 3
    s_cbranch_scc1 L_nofin""")
L("L_fin")
for q in range(4):
    E(f"""    ds_read_b128 v[{12*q}:{12*q+3}], {vT0} offset:{q*ACC_SZ}
    ds_read_b128 v[{12*q+4}:{12*q+7}], {vT0} offset:{q*ACC_SZ+1024}
    ds_read_b32 v{12*q+8}, {vT1} offset:{q*ACC_SZ+2048}""")
E(f"""    s_mov_b32 s10, {f2u(2.0**-40):#x}
    s_mov_b32 s11, {f2u(2.0**60):#x}
    s_waitcnt lgkmcnt(6)""")
for i in range(0, 8, 2): E(f"    v_pk_add_f32 v[{i}:{i+1}], v[{i}:{i+1}], v[{12+i}:{13+i}]")
E("    v_add_f32 v8, v8, v20\n    s_waitcnt lgkmcnt(0)")
for i in range(0, 8, 2): E(f"    v_pk_add_f32 v[{24+i}:{25+i}], v[{24+i}:{25+i}], v[{36+i}:{37+i}]")
E("    v_add_f32 v32, v32, v44")
for i in range(0, 8, 2): E(f"    v_pk_add_f32 v[{48+i}:{49+i}], v[{i}:{i+1}], v[{24+i}:{25+i}]")
E(f"""    v_add_f32 v56, v8, v32
    v_pk_add_f32 v[0:1], v[48:49], v[50:51]
    v_pk_add_f32 v[2:3], v[52:53], v[54:55]
    v_mov_b32 v4, 0x207
    v_pk_add_f32 v[0:1], v[0:1], v[2:3]
    v_cmp_nle_f32 s[12:13], s10, v56
    v_add_f32 v0, v0, v1
    v_cmp_nge_f32 s[64:65], s11, v56
    v_cmp_class_f32 vcc, v0, v4
    s_or_b64 s[12:13], s[12:13], s[64:65]
    s_or_b64 vcc, vcc, s[12:13]""")
if FORCE_FB:
    E("    s_mov_b64 vcc, -1")
E("    s_cbranch_vccnz L_fallback")
L("L_norm")
E("    v_rcp_f32 v57, v56\n    s_nop 0")
for i in range(8): E(f"    v_mul_f32 v{48+i}, v{48+i}, v57")
for i in range(4): E(f"    v_cvt_pk_bf16_f32 v{4+i}, v{48+2*i}, v{49+2*i}")
E(f"""    buffer_store_dwordx4 v[4:7], {vL16}, {SWS}, s61 offen sc1
    v_add_u32 {vT0}, 2304, {vT0}
    v_add_u32 {vT1}, 2304, {vT1}
    s_add_u32 s61, s61, 0x8000
    s_add_u32 s62, s62, 1
    s_cmp_lt_u32 s62, 2
    s_cbranch_scc1 L_fin
    s_lshl_b32 s10, {sB}, 5
    s_add_u32 s10, s10, {sHB}
    s_lshl_b32 s10, s10, 7
    s_add_u32 s10, s10, {OFL_OFF:#x}
    s_add_u32 s11, s69, {SY_FIN}
    v_mov_b32 v0, {sTAG}
    v_mov_b32 v1, s10
    v_mov_b32 v2, s11
    v_mov_b32 v3, 1
    s_waitcnt vmcnt(0)
    s_mov_b64 exec, 1
    buffer_store_dword v0, v1, {SWS}, 0 offen sc1
    ds_add_u32 v2, v3
    s_mov_b64 exec, -1""")
L("L_nofin")
E(f"""    s_cmp_lg_u32 {sRND}, 0
    s_cbranch_scc1 L_attdone
    s_mov_b32 {sRND}, 1
    s_add_u32 {sHB}, {sHB}, 16""")
E(f"""    ds_read_b128 v[64:67], v155 offset:4096
    ds_read_b128 v[68:71], v155 offset:5120""")
round_init()
for i in range(10, 16, 2):
    E(f"    v_mov_b64 v[{32+i}:{33+i}], 0")
    E(f"    v_mov_b64 v[{48+i}:{49+i}], 0")
stamp(5)
E(f"""    s_waitcnt lgkmcnt(0)
    v_mfma_f32_32x32x16_bf16 v[0:15], {K(4)}, v[64:67], 0
    s_nop 10
    s_branch L_pos4""")

L("L_fallback")
E(f"""    s_cmp_eq_u32 s62, 0
    s_cselect_b64 vcc, -1, 0
    v_cndmask_b32 v44, v68, v64, vcc
    v_cndmask_b32 v45, v69, v65, vcc
    v_cndmask_b32 v46, v70, v66, vcc
    v_cndmask_b32 v47, v71, v67, vcc
    v_mov_b32 v48, 0xff800000
    s_lshl_b32 s10, {sHB}, 17
    s_mov_b32 s11, 64""")
L("L_fb1")
E(f"""    buffer_load_dwordx4 v[32:35], {vL16}, {SWS}, s10 offen sc1
    s_add_u32 s10, s10, 0x800
    s_waitcnt vmcnt(0)
    v_mfma_f32_32x32x16_bf16 v[0:15], v[32:35], v[44:47], 0
    s_nop 12""")
for i in range(0, 16, 2): E(f"    v_max3_f32 v48, v{i}, v{i+1}, v48")
E(f"""    s_sub_u32 s11, s11, 1
    s_cmp_lg_u32 s11, 0
    s_cbranch_scc1 L_fb1
    v_mov_b32 v49, v48
    s_nop 1
    v_permlane32_swap_b32 v48, v49
    s_nop 1
    v_max_f32 v48, v48, v49""")
for i in range(16): E(f"    v_xor_b32 v{16+i}, 0x80000000, v48")
for i in range(0, 16, 2): E(f"    v_mov_b64 v[{48+i}:{49+i}], 0")
for i in range(36, 44): E(f"    v_mov_b32 v{i}, 0x3f803f80")
E(f"""    s_lshl_b32 s10, {sHB}, 17
    s_mov_b32 s11, 64""")
L("L_fb2")
E(f"""    buffer_load_dwordx4 v[32:35], {vL16}, {SWS}, s10 offen sc1
    s_mov_b64 exec, {sVM}
    buffer_load_dwordx4 v[36:39], {vVA}, {SWS}, s10 offen offset:1024 sc1
    buffer_load_dwordx4 v[40:43], {vVA}, {SWS}, s10 offen offset:1536 sc1
    s_mov_b64 exec, -1
    s_add_u32 s10, s10, 0x800
    s_waitcnt vmcnt(0)
    v_mfma_f32_32x32x16_bf16 v[0:15], v[32:35], v[44:47], v[16:31]
    s_nop 12""")
ex(0, 0, 16)
E(f"""    s_nop 1
    v_smfmac_f32_32x32x32_bf16 v[48:63], v[36:39], v[0:7], {vIDX}
    v_smfmac_f32_32x32x32_bf16 v[48:63], v[40:43], v[8:15], {vIDX}
    s_sub_u32 s11, s11, 1
    s_cmp_lg_u32 s11, 0
    s_cbranch_scc1 L_fb2
    s_nop 12
    s_branch L_norm""")

L("L_attdone")
stamp(6)
L("L_exit")
if DIAG:
    stamp(7)
    E(f"""    s_mul_i32 s10, s2, 12
    s_add_u32 s10, s10, {sW}
    s_lshl_b32 s10, s10, 7
    s_add_u32 s10, s10, {STAMP_OFF:#x}
    v_lshlrev_b32 v2, 2, {vLANE}
    s_mov_b32 exec_hi, 0
    buffer_store_dword {vSTAMP}, v2, {SWS}, s10 offen""")
L("L_end")
E(f"""    s_endpgm
.section .rodata,"a"
.p2align 6
.amdhsa_kernel {NAME}
  .amdhsa_next_free_vgpr 168
  .amdhsa_next_free_sgpr 96
  .amdhsa_accum_offset 168
  .amdhsa_group_segment_fixed_size 0
  .amdhsa_kernarg_size 96
  .amdhsa_user_sgpr_count 2
  .amdhsa_user_sgpr_kernarg_segment_ptr 1
  .amdhsa_system_sgpr_workgroup_id_x 1
.end_amdhsa_kernel""")

txt = "\n".join(out) + "\n"
dst = [a for a in sys.argv[1:] if not a.startswith("--")]
open(dst[0] if dst else "gated_mix__mha_block__moe_arch_mod__prompt.s", "w").write(txt)
```

```python
import sys, struct

NAME = "gated_mix__mha_block__moe_arch_mod__prompt_kernel"
DIAG = "--diag" in sys.argv
FORCE_FB = "--forcefb" in sys.argv
def opt(name, default):
    for a in sys.argv:
        if a.startswith(f"--{name}="): return a.split("=", 1)[1]
    return default
PRIOS = [int(c) for c in opt("prios", "332210")]
PREFETCH = int(opt("pf", "1"))

KV_OFF, O_OFF = 0, 0x400000
FL_OFF, OFL_OFF, RG_OFF, SEL_OFF, YP_OFF, PA_OFF = 0x800000, 0x810000, 0x830000, 0x834000, 0x838000, 0x868000
STAMP_OFF = 0x900000
WS_SIZE = 0xA00000
OOB = 0x4000000
LX, LG, SCR = 0, 65536, 131072
LQX = SCR
LACC = SCR + 8192
ACC_SZ = 4608
SYNC = LACC + 4 * ACC_SZ
MISC = SYNC + 256
LMOE = LG + 32768
SY_RED = SYNC
SY_FIN = SYNC + 16
SY_KV0 = SYNC + 32
SY_KV1 = SYNC + 36
SY_Q1 = SYNC + 40
SY_Q2 = SYNC + 44
SY_G2L = SYNC + 48
SY_G2D = SYNC + 52
SY_WQ2 = SYNC + 56
SY_WO = SYNC + 60
SY_KVOK = SYNC + 64

def f2u(x): return struct.unpack("<I", struct.pack("<f", x))[0]
QSCALE = f2u(0.25 * 1.4426950408889634)
LOG2E = f2u(1.4426950408889634)

out = []
def E(s=""):
    for ln in s.split("\n"):
        out.append(ln)
def L(name): out.append(name + ":")

sW, sG, sTY, sB, sC, sROT, sTAG, sHW = "s3", "s4", "s5", "s6", "s7", "s8", "s9", "s15"
SX, SWQ, SWS, ST, ST2 = "s[40:43]", "s[44:47]", "s[48:51]", "s[52:55]", "s[56:59]"
sVM = "s[70:71]"
sSOFF, sSTEP3, sSTEP5, sIT, sSPIN, sHB, sRND = "s72", "s73", "s74", "s75", "s76", "s77", "s78"
sRET, sRET2 = "s[80:81]", "s[82:83]"
sWA, sWN = "s88", "s89"
vLANE, vL16, vIDX, vVA = "v167", "v166", "v165", "v164"
vT0, vT1, vT2, vT3 = "v160", "v161", "v162", "v163"
vSTAMP = "v159"
vFL = "v158"

def stamp(i):
    if not DIAG: return
    E(f"""    s_memtime s[84:85]
    s_memrealtime s[86:87]
    s_waitcnt lgkmcnt(0)
    v_writelane_b32 {vSTAMP}, s84, {i}
    v_writelane_b32 {vSTAMP}, s86, {16+i}""")

def srd(reg, plo, size):
    n = int(reg[2:reg.index(":")])
    E(f"""    s_mov_b32 s{n}, s{plo}
    s_mov_b32 s{n+1}, s{plo+1}
    s_mov_b32 s{n+2}, {size:#x}
    s_mov_b32 s{n+3}, 0x20000""")

SPIN_MAX = 40000
lab = [0]
def newlab(p="L"):
    lab[0] += 1
    return f"{p}_{lab[0]}"

def poll_dword(vaddr, vdst, execmask=None, sleep=2):
    l0, l1 = newlab("poll"), newlab("polldone")
    if execmask: E(f"    s_mov_b64 exec, {execmask}")
    E(f"    s_mov_b32 {sSPIN}, 0")
    L(l0)
    E(f"""    buffer_load_dword {vdst}, {vaddr}, {SWS}, 0 offen sc1
    s_add_u32 {sSPIN}, {sSPIN}, 1
    s_waitcnt vmcnt(0)
    v_cmp_ne_u32 vcc, {sTAG}, {vdst}
    s_cbranch_vccz {l1}
    s_sleep {sleep}
    s_cmp_lt_u32 {sSPIN}, {SPIN_MAX}
    s_cbranch_scc1 {l0}""")
    L(l1)
    if execmask: E("    s_mov_b64 exec, -1")

def signal(addr):
    E(f"""    v_mov_b32 {vT2}, {addr}
    v_mov_b32 {vT3}, 1
    s_mov_b64 exec, 1
    ds_add_u32 {vT2}, {vT3}
    s_mov_b64 exec, -1""")
def lwait(addr, n):
    E(f"""    s_mov_b32 {sWA}, {addr}
    s_mov_b32 {sWN}, {n}
    s_call_b64 {sRET}, L_lwait""")
def get_tag():
    l0, l1 = newlab("tag"), newlab("tagok")
    srd(ST, 36, 256)
    E(f"""    v_mov_b32 {vT1}, 0
    s_mov_b32 {sSPIN}, 0""")
    L(l0)
    E(f"""    buffer_load_dword {vT0}, {vT1}, {ST}, 0 offen sc0 sc1
    s_add_u32 {sSPIN}, {sSPIN}, 1
    s_waitcnt vmcnt(0)
    v_readfirstlane_b32 {sTAG}, {vT0}
    s_cmp_ge_u32 {sSPIN}, {SPIN_MAX}
    s_cbranch_scc1 {l1}
    s_cmp_eq_u32 {sTAG}, 0
    s_cbranch_scc1 {l0}""")
    L(l1)
def publish_flag_last(counter, s_addr):
    l = newlab("nofl")
    E(f"""    v_mov_b32 {vT2}, {counter}
    v_mov_b32 {vT3}, 1
    v_mov_b32 {vT0}, {sTAG}
    v_mov_b32 {vT1}, {s_addr}
    s_mov_b64 exec, 1
    ds_add_rtn_u32 {vT3}, {vT2}, {vT3}
    s_waitcnt lgkmcnt(0)
    v_cmp_eq_u32 vcc, 3, {vT3}
    s_cbranch_vccz {l}
    buffer_store_dword {vT0}, {vT1}, {SWS}, 0 offen sc1""")
    L(l)
    E("    s_mov_b64 exec, -1")
def zero_acc(base=0):
    for i in range(0, 16, 2):
        E(f"    v_mov_b64 v[{base+i}:{base+i+1}], 0")
def xaddr_setup():
    E(f"""    v_and_b32 v2, 31, {vLANE}
    v_lshrrev_b32 v3, 5, {vLANE}
    v_bfe_u32 v4, {vLANE}, 1, 3
    v_xor_b32 v4, v4, v3
    v_lshlrev_b32 v4, 4, v4
    v_lshl_add_u32 v80, v2, 7, v4
    s_and_b32 s11, {sHW}, 1
    s_lshl_b32 s11, s11, 12
    v_add_u32 v80, s11, v80
    v_xor_b32 v81, 32, v80
    v_xor_b32 v82, 64, v80
    v_xor_b32 v83, 0x60, v80""")
def gaddr_setup():
    E(f"""    s_lshr_b32 s68, {sHW}, 1
    v_bfe_u32 v2, {vLANE}, 2, 2
    v_lshrrev_b32 v3, 5, {vLANE}
    v_lshl_add_u32 v4, v3, 3, v2
    v_lshlrev_b32 v4, 7, v4
    v_lshrrev_b32 v2, 1, v2
    v_xor_b32 v2, s68, v2
    v_lshl_add_u32 v4, v2, 6, v4
    v_bfe_u32 v5, {vLANE}, 4, 1
    v_lshl_add_u32 v4, v5, 5, v4
    v_and_b32 v2, 3, {vLANE}
    v_lshl_add_u32 v4, v2, 3, v4
    v_add_u32 v84, {LG:#x}, v4
    v_and_b32 v2, 0x33, {vLANE}
    v_bfe_u32 v4, {vLANE}, 2, 1
    v_lshl_or_b32 v2, v4, 3, v2
    v_bfe_u32 v4, {vLANE}, 3, 1
    v_lshl_or_b32 v2, v4, 2, v2
    v_lshlrev_b32 v85, 4, v2
    v_and_b32 v2, 15, {vLANE}
    v_lshlrev_b32 v2, 4, v2
    v_lshl_add_u32 v2, v3, 8, v2
    v_lshl_add_u32 v4, v5, 17, v2
    v_add_u32 v4, 0x400, v4
    s_cmp_eq_u32 {sTY}, 1
    s_cselect_b64 vcc, -1, 0
    s_movk_i32 s67, 0x200
    s_cselect_b32 s67, s67, 0x20000
    v_cndmask_b32 v85, v85, v4, vcc
    s_lshl_b32 s66, {sG}, 1
    s_add_u32 s66, s66, s68
    s_lshl_b32 s66, s66, 18
    s_lshl_b32 s11, {sB}, 1
    s_and_b32 s12, {sHW}, 1
    s_add_u32 s11, s11, s12
    s_lshl_b32 s11, s11, 11
    s_add_u32 s66, s66, s11
    s_lshl_b32 s65, {sC}, 5
    s_add_u32 s65, s65, {sB}
    s_lshl_b32 s65, s65, 7
    s_add_u32 s65, s65, {FL_OFF:#x}""")
def qaddr_setup():
    E(f"""    v_bfe_u32 v2, {vLANE}, 2, 2
    v_lshrrev_b32 v3, 5, {vLANE}
    v_lshl_add_u32 v2, v3, 3, v2
    v_lshlrev_b32 v2, 6, v2
    v_bfe_u32 v3, {vLANE}, 4, 1
    v_lshl_add_u32 v2, v3, 5, v2
    v_and_b32 v3, 3, {vLANE}
    v_lshl_add_u32 v2, v3, 3, v2
    v_add_u32 v84, {LG:#x}, v2""")
def kv_store():
    for i in range(8):
        E(f"    v_cvt_pk_bf16_f32 v{16+i}, v{2*i}, v{2*i+1}")
    E(f"""    s_add_u32 s11, s66, s67
    buffer_store_dwordx4 v[16:19], v85, {SWS}, s66 offen sc1
    buffer_store_dwordx4 v[20:23], v85, {SWS}, s11 offen sc1""")

E(f"""; fused gated-mix(MHA, top-1 MoD FFN): QKV GEMM -> attention -> out-proj + mix in one launch
; @launch grid=(256,1,1) block=(768,1,1) lds=163840
.amdgcn_target "amdgcn-amd-amdhsa--gfx950"
.text
.globl {NAME}
.p2align 8
.type {NAME},@function
{NAME}:
    s_load_dwordx16 s[16:31], s[0:1], 0
    s_load_dwordx8 s[32:39], s[0:1], 64
    s_cmp_ge_u32 s2, 256
    s_cbranch_scc1 L_end
    v_lshrrev_b32 v1, 6, v0
    v_and_b32 {vLANE}, 63, v0
    s_lshr_b32 s11, s2, 3                ; slot
    s_bfe_u32 {sG}, s2, 0x20001          ; (wg>>1)&3
    v_readfirstlane_b32 {sW}, v1
    s_and_b32 {sTY}, s11, 1
    s_and_b32 s12, s2, 1
    s_lshl_b32 s12, s12, 4
    s_lshr_b32 s13, s11, 1
    s_or_b32 {sB}, s12, s13
    s_lshl_b32 s12, {sTY}, 2
    s_add_u32 {sROT}, s13, s12
    s_and_b32 {sROT}, {sROT}, 7
    s_and_b32 {sHW}, {sW}, 3""")
if DIAG:
    E(f"    v_mov_b32 {vSTAMP}, 0")
    stamp(0)
E(f"""    s_cmp_ge_u32 {sW}, 4
    s_cbranch_scc1 L_FR""")

E(f"""    s_setprio 3
    v_lshrrev_b32 v2, 3, {vLANE}
    v_and_b32 v3, 7, {vLANE}
    v_lshrrev_b32 v4, 4, {vLANE}
    v_xor_b32 v5, v3, v4
    v_lshlrev_b32 v5, 4, v5
    v_lshl_add_u32 v90, v2, 10, v5        ; x even
    v_xor_b32 v91, 64, v90
    v_add_u32 v91, 0x2000, v91            ; x odd
    v_and_b32 v4, 1, v4
    v_lshlrev_b32 v4, 2, v4
    v_xor_b32 v5, v3, v4
    v_lshlrev_b32 v95, 4, v5
    v_mov_b32 v6, 0xc00
    v_mad_u32_u24 v92, v2, v6, v95        ; g even
    v_add_u32 v93, 0x6000, v92            ; g odd
    s_lshl_b32 s60, {sB}, 16
    s_lshl_b32 s61, {sW}, 14
    s_add_u32 s60, s60, s61
    s_lshl_b32 s61, {sTY}, 10
    s_lshl_b32 s62, {sG}, 7
    s_add_u32 s61, s61, s62
    s_mul_i32 s63, {sW}, 0xc000
    s_add_u32 s64, s61, s63
    s_add_u32 s64, s64, 0x400
    s_lshl_b32 s69, {sW}, 11
    s_mov_b32 s14, {sROT}
    s_mov_b32 s10, 0
    s_mov_b32 s42, 0x200000
    s_mov_b32 s43, 0x20000
    s_mov_b32 s46, 0x180000
    s_mov_b32 s47, 0x20000
    s_waitcnt lgkmcnt(0)
    s_mov_b64 s[40:41], s[16:17]
    s_mov_b64 s[44:45], s[18:19]""")
L("L_dma1")
E(f"""    s_lshl_b32 s11, s14, 7
    s_add_u32 s11, s11, s60
    s_mul_i32 s12, s14, 0x30000
    s_add_u32 s12, s12, s64
    s_mov_b32 m0, s69
    s_add_u32 s14, s14, 1
    buffer_load_dwordx4 v90, {SX}, s11 offen lds
    s_add_u32 m0, s69, 0x400
    s_and_b32 s14, s14, 7
    buffer_load_dwordx4 v91, {SX}, s11 offen lds
    s_add_u32 m0, s69, {LG:#x}
    s_add_u32 s10, s10, 1
    buffer_load_dwordx4 v92, {SWQ}, s12 offen lds
    s_add_u32 m0, s69, {LG+0x400:#x}
    s_add_u32 s69, s69, 0x2000
    buffer_load_dwordx4 v93, {SWQ}, s12 offen lds
    s_cmp_lt_u32 s10, 4
    s_cbranch_scc1 L_dma1
    s_waitcnt vmcnt(12)
    s_barrier
    s_cmp_lt_u32 s10, 8
    s_cbranch_scc1 L_dma1
    v_lshrrev_b32 v2, 2, {vLANE}
    v_and_b32 v3, 3, {vLANE}
    v_lshlrev_b32 v3, 4, v3
    v_mad_u32_u24 v94, v2, v6, v3
    s_lshl_b32 s61, {sTY}, 6
    s_add_u32 s61, s61, s62
    s_add_u32 s79, s61, s63
    s_lshl_b32 s69, {sW}, 10
    s_add_u32 s69, s69, {LG:#x}
    s_mov_b32 s10, 0""")
L("L_dmaq")
E(f"""    s_mul_i32 s12, s14, 0x30000
    s_add_u32 s12, s12, s79
    s_mov_b32 m0, s69
    s_add_u32 s14, s14, 1
    s_and_b32 s14, s14, 7
    buffer_load_dwordx4 v94, {SWQ}, s12 offen lds
    s_add_u32 s69, s69, 0x1000
    s_add_u32 s10, s10, 1
    s_and_b32 s11, s10, 3
    s_cbranch_scc1 L_dmaq
    s_waitcnt vmcnt(12)
    s_barrier
    s_cmp_lt_u32 s10, 8
    s_cbranch_scc1 L_dmaq
    s_waitcnt vmcnt(8)
    s_barrier
    s_lshl_b32 {sC}, {sG}, 1
    s_or_b32 {sC}, {sC}, {sTY}
    v_lshlrev_b32 {vL16}, 4, {vLANE}""")
srd(SWS, 38, WS_SIZE)
xaddr_setup()
gaddr_setup()
E(f"""    s_add_u32 s66, s66, 0x200000
    s_add_u32 s65, s65, 0x8000
    s_add_u32 s64, s64, 0x200
    s_add_u32 s79, s79, 0x200
    s_waitcnt vmcnt(0)
    s_barrier                             ; barrier A""")
stamp(1)
E(f"""    s_xor_b32 s14, s14, 4
    s_lshl_b32 s69, {sW}, 11
    s_add_u32 s69, s69, {LG+0x8000:#x}
    s_mov_b32 s10, 0""")
L("L_dmag2")
E(f"""    s_mul_i32 s12, s14, 0x30000
    s_add_u32 s12, s12, s64
    s_mov_b32 m0, s69
    s_add_u32 s14, s14, 1
    s_and_b32 s14, s14, 7
    buffer_load_dwordx4 v92, {SWQ}, s12 offen lds
    s_add_u32 m0, s69, 0x400
    s_add_u32 s69, s69, 0x2000
    s_add_u32 s10, s10, 1
    buffer_load_dwordx4 v93, {SWQ}, s12 offen lds
    s_and_b32 s11, s10, 3
    s_cbranch_scc1 L_dmag2
    s_cmp_eq_u32 s10, 8
    s_cbranch_scc1 L_g2issued""")
lwait(SY_Q1, 2)
E(f"""    s_sub_u32 s69, s69, 0x10000
    s_branch L_dmag2""")
L("L_g2issued")
E(f"    s_xor_b32 s14, s14, 4")
get_tag()
signal(SY_G2L)
lwait(SY_G2L, 4)
stamp(2)
E(f"""    s_cmp_eq_u32 {sTY}, 1
    s_cbranch_scc1 L_g2V
    s_call_b64 {sRET}, L_pgemmK
    s_branch L_g2E""")
L("L_g2V")
E(f"    s_call_b64 {sRET}, L_pgemmV")
L("L_g2E")
kv_store()
signal(SY_G2D)
lwait(SY_G2D, 4)
E(f"""    s_lshl_b32 s69, {sW}, 10
    s_add_u32 s69, s69, {LG:#x}
    s_mov_b32 s10, 0
    s_waitcnt vmcnt(0)""")
publish_flag_last(SY_KV1, "s65")
L("L_dmaq2")
E(f"""    s_mul_i32 s12, s14, 0x30000
    s_add_u32 s12, s12, s79
    s_mov_b32 m0, s69
    s_add_u32 s14, s14, 1
    s_and_b32 s14, s14, 7
    buffer_load_dwordx4 v94, {SWQ}, s12 offen lds
    s_add_u32 s69, s69, 0x1000
    s_add_u32 s10, s10, 1
    s_cmp_lt_u32 s10, 8
    s_cbranch_scc1 L_dmaq2
    s_waitcnt vmcnt(0)""")
signal(SY_WQ2)
stamp(3)
E(f"""    s_cmp_eq_u32 {sW}, 2
    s_cbranch_scc1 L_moe
    s_cmp_eq_u32 {sW}, 3
    s_cbranch_scc1 L_h3""")
xaddr_setup()
qaddr_setup()
lwait(SY_WQ2, 4)
E(f"""    s_lshl_b32 s11, {sW}, 10
    s_add_u32 s11, s11, {LQX+4096}
    v_add_u32 v86, s11, {vL16}
    s_call_b64 {sRET2}, L_qtile""")
signal(SY_Q2)
lwait(SY_Q2, 2)
srd(ST, 20, 0x80000)
E(f"""    v_lshrrev_b32 v2, 3, {vLANE}
    v_lshl_add_u32 v2, v2, 10, v95
    s_lshl_b32 s10, {sW}, 18
    s_lshl_b32 s11, {sC}, 7
    s_add_u32 s10, s10, s11
    s_lshl_b32 s11, {sW}, 15
    s_mov_b32 s12, 32""")
L("L_dmawo")
E(f"""    s_mov_b32 m0, s11
    s_add_u32 s11, s11, 0x400
    buffer_load_dwordx4 v2, {ST}, s10 offen lds
    s_add_u32 s10, s10, 0x2000
    s_sub_u32 s12, s12, 1
    s_waitcnt vmcnt(3)
    s_cmp_lg_u32 s12, 0
    s_cbranch_scc1 L_dmawo
    s_waitcnt vmcnt(0)""")
signal(SY_WO)
E("    s_branch L_outproj")
L("L_h3")
E(f"""    s_lshl_b32 s11, {sG}, 13
    s_add_u32 s11, s11, {FL_OFF+0x8000:#x}
    v_lshlrev_b32 v2, 7, {vLANE}
    v_add_u32 v2, s11, v2""")
poll_dword("v2", "v3", None, sleep=8)
signal(SY_KVOK)
E("    s_branch L_outproj")

L("L_moe")
E(f"""    v_bfe_u32 v2, {vLANE}, 2, 2
    v_lshrrev_b32 v3, 5, {vLANE}
    v_lshl_add_u32 v100, v3, 3, v2        ; 8hh+r
    v_bfe_u32 v5, {vLANE}, 4, 1
    v_and_b32 v6, 3, {vLANE}
    v_lshlrev_b32 v6, 3, v6
    v_lshl_add_u32 v101, v5, 5, v6
    v_lshlrev_b32 v102, 4, v3             ; hh*16
    v_lshlrev_b32 v103, 3, {vLANE}        ; lane*8
    s_cmp_lt_u32 s2, 172
    s_cbranch_scc1 L_moeA
    s_cmp_lt_u32 s2, 215
    s_cbranch_scc1 L_moeB
    s_cmp_lg_u32 s2, 255
    s_cbranch_scc1 L_outproj
    ; ---- argmax over the router keys ----
    s_mov_b32 {sSPIN}, 0""")
L("L_keys")
E(f"    s_mov_b32 s10, {RG_OFF:#x}")
for i in range(16):
    E(f"    buffer_load_dwordx2 v[{16+2*i}:{17+2*i}], {vL16}, {SWS}, s10 offen offset:{(i%4)*1024} sc1")
    if i % 4 == 3: E("    s_add_u32 s10, s10, 0x1000")
E(f"""    s_add_u32 {sSPIN}, {sSPIN}, 1
    v_mov_b32 v2, 0
    v_mov_b32 v3, 0
    s_waitcnt vmcnt(0)""")
for i in range(16):
    E(f"""    v_xor_b32 v{17+2*i}, {sTAG}, v{17+2*i}
    v_max_u32 v2, v2, v{16+2*i}
    v_or_b32 v3, v3, v{17+2*i}""")
E(f"""    v_cmp_ne_u32 vcc, 0, v3
    s_cbranch_vccz L_keysok
    s_sleep 8
    s_cmp_lt_u32 {sSPIN}, {SPIN_MAX}
    s_cbranch_scc1 L_keys""")
L("L_keysok")
for dpp in ("quad_perm:[1,0,3,2] row_mask:0xf bank_mask:0xf", "quad_perm:[2,3,0,1] row_mask:0xf bank_mask:0xf",
            "row_half_mirror row_mask:0xf bank_mask:0xf", "row_mirror row_mask:0xf bank_mask:0xf",
            "row_bcast:15 row_mask:0xa bank_mask:0xf", "row_bcast:31 row_mask:0xc bank_mask:0xf"):
    E(f"    s_nop 1\n    v_max_u32_dpp v2, v2, v2 {dpp}")
E(f"""    v_mov_b32 v3, {sTAG}
    v_mov_b32 v4, {SEL_OFF:#x}
    s_mov_b32 exec_lo, 0
    s_mov_b32 exec_hi, 0x80000000
    buffer_store_dwordx2 v[2:3], v4, {SWS}, 0 offen sc1
    s_mov_b64 exec, -1
    s_branch L_outproj""")
L("L_moeA")
srd(ST, 26, 512*2752)
srd(ST2, 28, 512*2752)
E(f"""    s_mul_i32 s60, s2, 1525
    s_lshr_b32 s60, s60, 16
    s_mul_i32 s11, s60, 43
    s_sub_u32 s61, s2, s11                ; fb
    v_lshrrev_b32 v2, 2, {vLANE}
    v_and_b32 v3, 3, {vLANE}
    v_mul_u32_u24 v2, 2752, v2
    v_lshl_add_u32 v2, v3, 4, v2
    s_mul_i32 s10, s60, {128*2752}
    s_lshl_b32 s11, s61, 6
    s_add_u32 s10, s10, s11
    s_mov_b32 s11, {LMOE}
    s_mov_b32 s12, 8""")
L("L_dmagu")
E(f"""    s_mov_b32 m0, s11
    s_sub_u32 s12, s12, 1
    buffer_load_dwordx4 v2, {ST}, s10 offen lds
    s_add_u32 m0, s11, 0x2000
    s_add_u32 s11, s11, 0x400
    buffer_load_dwordx4 v2, {ST2}, s10 offen lds
    s_add_u32 s10, s10, {16*2752}
    s_waitcnt vmcnt(2)
    s_cmp_lg_u32 s12, 0
    s_cbranch_scc1 L_dmagu
    v_mov_b32 v4, {SEL_OFF:#x}
    s_mov_b32 {sSPIN}, 0""")
L("L_selA")
E(f"""    buffer_load_dwordx2 v[2:3], v4, {SWS}, 0 offen sc1
    s_add_u32 {sSPIN}, {sSPIN}, 1
    s_waitcnt vmcnt(0)
    v_cmp_ne_u32 vcc, {sTAG}, v3
    s_cbranch_vccz L_selAok
    s_sleep 8
    s_cmp_lt_u32 {sSPIN}, {SPIN_MAX}
    s_cbranch_scc1 L_selA""")
L("L_selAok")
E(f"""    v_readfirstlane_b32 s10, v2
    s_and_b32 s10, s10, 0x7ff
    s_sub_u32 s10, 2047, s10
    s_lshl_b32 s10, s10, 10
    s_lshl_b32 s11, s60, 8
    s_add_u32 s10, s10, s11""")
for ks in range(8):
    E(f"    buffer_load_dwordx4 v[{32+4*ks}:{35+4*ks}], v102, {SX}, s10 offen offset:{ks*32}")
E(f"""    v_lshl_add_u32 v4, v100, 6, v101
    v_add_u32 v104, {LMOE}, v4""")
zero_acc(0); zero_acc(16)
for half in range(2):
    for k4 in range(4):
        ks = half * 4 + k4
        for m in range(2):
            b = 64 + 8 * k4 + 4 * m
            E(f"""    ds_read_b64_tr_b16 v[{b}:{b+1}], v104 offset:{m*8192+ks*1024}
    ds_read_b64_tr_b16 v[{b+2}:{b+3}], v104 offset:{m*8192+ks*1024+256}""")
    E("    s_waitcnt vmcnt(0) lgkmcnt(0)")
    for k4 in range(4):
        ks = half * 4 + k4
        for m in range(2):
            b = 64 + 8 * k4 + 4 * m
            a = 16 * m
            E(f"    v_mfma_f32_32x32x16_bf16 v[{a}:{a+15}], v[{32+4*ks}:{35+4*ks}], v[{b}:{b+3}], v[{a}:{a+15}]")
E(f"""    v_cmp_gt_u32 vcc, 32, {vLANE}
    s_lshl_b32 s10, s61, 2
    s_add_u32 s10, s10, s60
    s_lshl_b32 s10, s10, 9
    s_add_u32 s10, s10, {PA_OFF:#x}
    v_mov_b32 v33, {sTAG}
    s_nop 7
    v_cndmask_b32 v32, v16, v0, vcc
    buffer_store_dwordx2 v[32:33], v103, {SWS}, s10 offen sc1
    s_branch L_outproj""")
L("L_moeB")
srd(ST, 30, 1376*1024)
E(f"""    s_sub_u32 s61, s2, 172
    s_lshl_b32 s10, s61, 15
    s_mov_b32 s11, {LMOE}
    s_mov_b32 s12, 32""")
L("L_dmawd")
E(f"""    s_mov_b32 m0, s11
    s_add_u32 s11, s11, 0x400
    buffer_load_dwordx4 {vL16}, {ST}, s10 offen lds
    s_add_u32 s10, s10, 0x400
    s_sub_u32 s12, s12, 1
    s_waitcnt vmcnt(7)
    s_cmp_lg_u32 s12, 0
    s_cbranch_scc1 L_dmawd
    s_lshl_b32 s10, s61, 11
    s_add_u32 s10, s10, {PA_OFF:#x}
    s_mov_b32 {sSPIN}, 0""")
L("L_pa")
for i in range(4):
    E(f"    buffer_load_dwordx2 v[{2*i}:{2*i+1}], v103, {SWS}, s10 offen offset:{i*512} sc1")
E(f"""    s_add_u32 {sSPIN}, {sSPIN}, 1
    s_waitcnt vmcnt(0)
    v_xor_b32 v1, {sTAG}, v1
    v_xor_b32 v3, {sTAG}, v3
    v_xor_b32 v5, {sTAG}, v5
    v_xor_b32 v7, {sTAG}, v7
    v_or3_b32 v1, v1, v3, v5
    v_or_b32 v1, v1, v7
    v_cmp_ne_u32 vcc, 0, v1
    s_cbranch_vccz L_paok
    s_sleep 16
    s_cmp_lt_u32 {sSPIN}, {SPIN_MAX}
    s_cbranch_scc1 L_pa""")
L("L_paok")
E(f"""    v_add_f32 v0, v0, v2
    v_add_f32 v4, v4, v6
    v_add_f32 v0, v0, v4
    v_mov_b32 v1, v0
    s_nop 1
    v_permlane32_swap_b32 v0, v1
    s_nop 1
    v_cvt_pk_bf16_f32 v2, v0, v1
    s_mov_b32 s11, {LOG2E:#x}
    v_lshlrev_b32 v0, 16, v2
    v_and_b32 v1, 0xffff0000, v2
    v_mul_f32 v3, s11, v0
    v_exp_f32 v3, -v3
    s_nop 0
    v_add_f32 v3, 1.0, v3
    v_rcp_f32 v3, v3
    s_nop 0
    v_mul_f32 v3, v0, v3
    v_cvt_pk_bf16_f32 v3, v3, v3
    v_lshlrev_b32 v3, 16, v3
    v_mul_f32 v3, v3, v1
    v_cvt_pk_bf16_f32 v3, v3, v3
    v_and_b32 v2, 31, {vLANE}
    v_lshlrev_b32 v2, 1, v2
    v_add_u32 v2, {MISC+2048}, v2
    ds_write_b16 v2, v3
    v_add_u32 v2, {MISC+2048}, v102
    v_lshl_add_u32 v104, v100, 10, v101
    v_add_u32 v104, {LMOE}, v104
    s_waitcnt lgkmcnt(0)
    ds_read_b128 v[32:35], v2
    ds_read_b128 v[36:39], v2 offset:32
    v_cmp_gt_u32 vcc, 32, {vLANE}
    v_mov_b32 v41, {sTAG}
    s_lshl_b32 s10, s61, 12
    s_add_u32 s10, s10, {YP_OFF:#x}
    s_mov_b32 s12, 8""")
L("L_down")
for ct in range(2):
    for ks in range(2):
        b = 64 + 8 * ct + 4 * ks
        E(f"""    ds_read_b64_tr_b16 v[{b}:{b+1}], v104 offset:{ks*16384+ct*64}
    ds_read_b64_tr_b16 v[{b+2}:{b+3}], v104 offset:{ks*16384+ct*64+4096}""")
E(f"""    v_add_u32 v104, 128, v104
    s_waitcnt lgkmcnt(0)
    v_mfma_f32_32x32x16_bf16 v[0:15], v[32:35], v[64:67], 0
    v_mfma_f32_32x32x16_bf16 v[16:31], v[32:35], v[72:75], 0
    v_mfma_f32_32x32x16_bf16 v[0:15], v[36:39], v[68:71], v[0:15]
    v_mfma_f32_32x32x16_bf16 v[16:31], v[36:39], v[76:79], v[16:31]
    s_nop 12
    v_cndmask_b32 v40, v16, v0, vcc
    buffer_store_dwordx2 v[40:41], v103, {SWS}, s10 offen sc1
    s_add_u32 s10, s10, 0x200
    s_sub_u32 s12, s12, 1
    s_cmp_lg_u32 s12, 0
    s_cbranch_scc1 L_down""")

L("L_outproj")
stamp(4)
E(f"""    s_lshr_b32 s68, {sW}, 1               ; ct
    s_and_b32 s69, {sW}, 1                ; qt
    v_bfe_u32 v98, {vLANE}, 2, 2
    v_lshrrev_b32 v97, 5, {vLANE}         ; hh
    v_lshl_add_u32 v99, v97, 2, v98
    v_lshlrev_b32 v99, 7, v99
    v_lshrrev_b32 v98, 1, v98
    v_xor_b32 v98, s68, v98
    v_lshl_add_u32 v99, v98, 6, v99
    v_bfe_u32 v98, {vLANE}, 4, 1
    v_lshl_add_u32 v99, v98, 5, v99
    v_and_b32 v98, 1, {vLANE}
    v_lshl_add_u32 v99, v98, 4, v99
    v_bfe_u32 v98, {vLANE}, 1, 1
    v_lshl_add_u32 v99, v98, 3, v99
    v_and_b32 v96, 31, {vLANE}
    v_lshlrev_b32 v100, 4, v97
    v_lshl_add_u32 v100, v96, 10, v100
    s_lshl_b32 s63, {sB}, 16
    s_lshl_b32 s10, s69, 15
    s_add_u32 s63, s63, s10
    s_add_u32 s64, s63, {O_OFF:#x}
    s_lshl_b32 s10, {sC}, 7
    s_add_u32 s63, s63, s10
    s_lshl_b32 s10, s68, 6
    s_add_u32 s63, s63, s10
    buffer_load_dwordx4 v[104:107], v100, {SX}, s63 offen
    buffer_load_dwordx4 v[108:111], v100, {SX}, s63 offen offset:32
    s_lshl_b32 s10, {sB}, 12
    s_add_u32 s10, s10, {OFL_OFF:#x}
    v_lshlrev_b32 v101, 8, {vLANE}
    v_add_u32 v101, s10, v101
    s_lshl_b32 s10, {sB}, 5
    s_lshl_b32 s11, s69, 4
    s_add_u32 s10, s10, s11
    v_lshrrev_b32 v112, 1, v96
    v_add_u32 v112, s10, v112
    v_lshlrev_b32 v112, 4, v112
    v_add_u32 v112, {RG_OFF+8:#x}, v112
    v_mov_b32 v113, {SEL_OFF:#x}
    s_mov_b32 {sSPIN}, 0""")
L("L_gsel")
E(f"""    buffer_load_dwordx2 v[114:115], v112, {SWS}, 0 offen sc1
    buffer_load_dwordx2 v[116:117], v113, {SWS}, 0 offen sc1
    s_add_u32 {sSPIN}, {sSPIN}, 1
    s_waitcnt vmcnt(0)
    v_cmp_ne_u32 vcc, {sTAG}, v115
    v_cmp_ne_u32 s[12:13], {sTAG}, v117
    s_or_b64 vcc, vcc, s[12:13]
    s_cbranch_vccz L_gselok
    s_sleep 16
    s_cmp_lt_u32 {sSPIN}, {SPIN_MAX}
    s_cbranch_scc1 L_gsel""")
L("L_gselok")
E(f"""    v_readfirstlane_b32 s60, v116
    v_and_b32 v98, 1, {vLANE}
    v_cmp_eq_u32 vcc, 1, v98
    v_lshlrev_b32 v118, 16, v114
    v_and_b32 v119, 0xffff0000, v114
    v_cndmask_b32 v118, v118, v119, vcc   ; g
    v_sub_f32 v119, 1.0, v118
    v_cvt_pk_bf16_f32 v119, v119, v119
    v_and_b32 v119, 0xffff0000, v119      ; bf16(1-g)""")
for i in range(8):
    E(f"    v_lshlrev_b32 v{80+2*i}, 16, v{104+i}")
    E(f"    v_and_b32 v{81+2*i}, 0xffff0000, v{104+i}")
zero_acc(0)
lwait(SY_WO, 2)
E("    s_mov_b32 s62, 0                      ; batch")
L("L_batch")
E(f"""    s_and_b32 s10, s62, 1
    s_lshr_b32 s11, s62, 1
    s_lshl_b32 s12, s11, 4
    s_add_u32 s61, s10, s12
    s_lshl_b32 s12, s61, 11
    v_add_u32 v102, s12, v99""")
for i in range(8):
    E(f"""    ds_read_b64_tr_b16 v[{48+4*i}:{49+4*i}], v102 offset:{i*4096}
    ds_read_b64_tr_b16 v[{50+4*i}:{51+4*i}], v102 offset:{i*4096+1024}""")
E(f"""    s_lshl_b32 s12, s61, 7
    v_add_u32 v103, s12, v101
    s_lshl_b32 s10, s10, 1
    s_add_u32 s10, s10, s11
    s_lshl_b32 s10, s10, 2
    s_add_u32 {sWA}, s10, {SY_FIN}
    s_mov_b32 {sWN}, 1
    s_call_b64 {sRET}, L_lwait""")
poll_dword("v103", vT0, "0xff", sleep=2)
E(f"""    s_lshl_b32 s10, s61, 10
    s_add_u32 s10, s10, s64""")
for i in range(8):
    E(f"    buffer_load_dwordx4 v[{16+4*i}:{19+4*i}], {vL16}, {SWS}, s10 offen offset:{(i%2)*2048} sc1")
    if i % 2 == 1 and i < 7: E("    s_add_u32 s10, s10, 0x1000")
for i in range(8):
    E(f"    s_waitcnt vmcnt({7-i})")
    E(f"    v_mfma_f32_32x32x16_bf16 v[0:15], v[{48+4*i}:{51+4*i}], v[{16+4*i}:{19+4*i}], v[0:15]")
E(f"""    s_add_u32 s62, s62, 1
    s_cmp_eq_u32 s62, 4
    s_cbranch_scc1 L_final
    s_cmp_lg_u32 s62, 2
    s_cbranch_scc1 L_batch""")
stamp(5)
E(f"""    s_and_b32 s10, s60, 0x7ff
    s_sub_u32 s14, 2047, s10              ; idx
    s_lshr_b32 s10, s14, 5
    s_lshl_b32 s11, {sB}, 1
    s_add_u32 s11, s11, s69
    s_cmp_lg_u32 s10, s11
    s_cbranch_scc1 L_noupd
    s_lshl_b32 s10, {sC}, 9
    s_lshl_b32 s11, s68, 8
    s_add_u32 s13, s10, s11
    s_add_u32 s13, s13, {YP_OFF:#x}
    v_mul_u32_u24 v120, {21*4096}, v97
    v_lshl_add_u32 v120, v96, 3, v120
    s_mov_b32 {sSPIN}, 0""")
L("L_ypoll")
E("    s_mov_b32 s10, s13")
for i in range(22):
    E(f"    buffer_load_dwordx2 v[{16+2*i}:{17+2*i}], v120, {SWS}, s10 offen sc1")
    E(f"    s_add_u32 s10, s10, 0x1000")
E(f"""    s_add_u32 {sSPIN}, {sSPIN}, 1
    v_mov_b32 v121, 0
    s_waitcnt vmcnt(0)""")
for i in range(22):
    E(f"    v_xor_b32 v{17+2*i}, {sTAG}, v{17+2*i}")
    E(f"    v_or_b32 v121, v121, v{17+2*i}")
E(f"""    v_cmp_ne_u32 vcc, 0, v121
    s_cbranch_vccz L_yok
    s_sleep 16
    s_cmp_lt_u32 {sSPIN}, {SPIN_MAX}
    s_cbranch_scc1 L_ypoll""")
L("L_yok")
E(f"""    v_cmp_gt_u32 vcc, 32, {vLANE}
    s_nop 1
    v_cndmask_b32 v16, 0, v16, vcc""")
for i in range(1, 22):
    E(f"    v_add_f32 v16, v16, v{16+2*i}")
E(f"""    v_mov_b32 v17, v16
    s_and_b32 s10, s60, 0xffff0000
    s_ashr_i32 s11, s10, 31
    v_permlane32_swap_b32 v16, v17
    s_not_b32 s11, s11
    s_or_b32 s11, s11, 0x80000000
    s_xor_b32 s10, s10, s11
    s_and_b32 s10, s10, 0xffff0000
    v_mov_b32 v24, {LOG2E:#x}
    v_mul_f32 v24, s10, v24
    v_exp_f32 v24, -v24
    v_add_f32 v20, v16, v17
    v_add_f32 v24, 1.0, v24
    v_rcp_f32 v24, v24
    v_cvt_pk_bf16_f32 v20, v20, v20
    v_cvt_pk_bf16_f32 v24, v24, v24
    v_and_b32 v24, 0xffff0000, v24
    v_and_b32 v20, 0xffff0000, v20
    v_mul_f32 v20, v20, v24
    v_cvt_pk_bf16_f32 v20, v20, v20
    v_and_b32 v20, 0xffff0000, v20
    s_lshl_b32 s10, {sW}, 10
    s_add_u32 s10, s10, {MISC}
    v_lshl_add_u32 v21, v96, 2, s10
    v_lshl_add_u32 v121, v97, 5, s10
    ds_write_b32 v21, v20
    s_waitcnt lgkmcnt(0)
    ds_read_b128 v[16:19], v121
    ds_read_b128 v[20:23], v121 offset:16
    ds_read_b128 v[24:27], v121 offset:64
    ds_read_b128 v[28:31], v121 offset:80
    s_and_b32 s10, s14, 31
    v_cmp_eq_u32 vcc, s10, v96
    s_nop 0
    s_waitcnt lgkmcnt(0)""")
for i in range(16):
    E(f"    v_cndmask_b32 v{16+i}, 0, v{16+i}, vcc")
    E(f"    v_add_f32 v{80+i}, v{80+i}, v{16+i}")
for i in range(8):
    E(f"    v_cvt_pk_bf16_f32 v{16+i}, v{80+2*i}, v{81+2*i}")
for i in range(8):
    E(f"    v_lshlrev_b32 v{80+2*i}, 16, v{16+i}")
    E(f"    v_and_b32 v{81+2*i}, 0xffff0000, v{16+i}")
L("L_noupd")
for i in range(16):
    E(f"    v_mul_f32 v{80+i}, v119, v{80+i}")
stamp(6)
E("    s_branch L_batch")
L("L_final")
srd(ST, 34, 0x200000)
E("    s_nop 4")
for i in range(16):
    E(f"    v_fma_f32 v{i}, v{i}, v118, v{80+i}")
for i in range(8):
    E(f"    v_cvt_pk_bf16_f32 v{16+i}, v{2*i}, v{2*i+1}")
E(f"""    buffer_store_dwordx4 v[16:19], v100, {ST}, s63 offen
    buffer_store_dwordx4 v[20:23], v100, {ST}, s63 offen offset:32
    s_branch L_exit""")

L("L_lwait")
E(f"""    v_mov_b32 {vT2}, {sWA}
    s_mov_b32 {sSPIN}, 0""")
L("L_lwait1")
E(f"""    ds_read_b32 {vT3}, {vT2}
    s_add_u32 {sSPIN}, {sSPIN}, 1
    s_waitcnt lgkmcnt(0)
    v_cmp_le_u32 vcc, {sWN}, {vT3}
    s_cbranch_vccnz L_lwait2
    s_sleep 2
    s_cmp_lt_u32 {sSPIN}, 0x80000
    s_cbranch_scc1 L_lwait1""")
L("L_lwait2")
E(f"    s_setpc_b64 {sRET}")

def reads(kind, buf, coff=0):
    ks_s, h_s = (1024, 256) if kind == "Q" else (2048, 512)
    wo = coff // 2 if kind == "Q" else coff
    for ks in range(4):
        b = 16 + 32 * buf
        E(f"""    ds_read_b128 v[{b+4*ks}:{b+3+4*ks}], v{80+ks} offset:{coff}
    ds_read_b64_tr_b16 v[{b+16+4*ks}:{b+17+4*ks}], v84 offset:{wo+ks*ks_s}
    ds_read_b64_tr_b16 v[{b+18+4*ks}:{b+19+4*ks}], v84 offset:{wo+ks*ks_s+h_s}""")
def mm(kind, buf, ks):
    b = 16 + 32 * buf
    x, w = f"v[{b+4*ks}:{b+3+4*ks}]", f"v[{b+16+4*ks}:{b+19+4*ks}]"
    if kind == "V": E(f"    v_mfma_f32_32x32x16_bf16 v[0:15], {x}, {w}, v[0:15]")
    else: E(f"    v_mfma_f32_32x32x16_bf16 v[0:15], {w}, {x}, v[0:15]")
def adv(kind, n):
    for ks in range(4): E(f"    v_add_u32 v{80+ks}, {n*0x2000:#x}, v{80+ks}")
    E(f"    v_add_u32 v84, {n*(0x1000 if kind == 'Q' else 0x2000):#x}, v84")
def bgemm(label, kind):
    L(label)
    E("    s_mov_b32 s60, 8")
    L(label + "_l")
    E("    s_barrier")
    reads(kind, 0)
    adv(kind, 1)
    E("    s_sub_u32 s60, s60, 1")
    for ks in range(4):
        E(f"    s_waitcnt lgkmcnt({9-3*ks})")
        mm(kind, 0, ks)
    E(f"""    s_cmp_lg_u32 s60, 0
    s_cbranch_scc1 {label}_l""")
def pgemm(label, kind):
    L(label)
    zero_acc()
    reads(kind, 0)
    E("    s_mov_b32 s60, 4")
    L(label + "_l")
    E("    s_waitcnt lgkmcnt(0)")
    reads(kind, 1, 0x2000)
    adv(kind, 2)
    for ks in range(4): mm(kind, 0, ks)
    E("    s_waitcnt lgkmcnt(0)")
    reads(kind, 0)
    E("    s_sub_u32 s60, s60, 1")
    for ks in range(4): mm(kind, 1, ks)
    E(f"""    s_cmp_lg_u32 s60, 0
    s_cbranch_scc1 {label}_l
    s_waitcnt lgkmcnt(0)
    s_nop 8
    s_setpc_b64 {sRET}""")
pgemm("L_pgemmK", "K")
pgemm("L_pgemmV", "V")
L("L_qtile")
E(f"    s_call_b64 {sRET}, L_pgemmQ")
E(f"    s_mov_b32 s11, {QSCALE:#x}")
for i in range(16):
    E(f"    v_mul_f32 v{i}, s11, v{i}")
for i in range(8):
    E(f"    v_cvt_pk_bf16_f32 v{16+i}, v{2*i}, v{2*i+1}")
E(f"""    ds_write_b128 v86, v[16:19]
    ds_write_b128 v86, v[20:23] offset:2048
    s_waitcnt lgkmcnt(0)
    s_setpc_b64 {sRET2}""")
pgemm("L_pgemmQ", "Q")

L("L_FR")
E(f"""    s_lshl_b32 {sC}, {sG}, 1
    s_or_b32 {sC}, {sC}, {sTY}
    v_lshlrev_b32 {vL16}, 4, {vLANE}""")
xaddr_setup()
E(f"""    s_cmp_ge_u32 {sW}, 8
    s_cbranch_scc1 L_R""")
gaddr_setup()
zero_acc()
E("    s_waitcnt lgkmcnt(0)")
srd(SWS, 38, WS_SIZE)
E(f"""    s_cmp_eq_u32 {sTY}, 1
    s_cbranch_scc1 L_bgemmV""")
bgemm("L_bgemmK", "K")
E("    s_branch L_genE")
bgemm("L_bgemmV", "V")
L("L_genE")
E("    s_nop 9")
kv_store()
stamp(1)
E("    s_barrier                             ; barrier A")
get_tag()
publish_flag_last(SY_KV0, "s65")
stamp(2)
E("    s_branch L_att")

L("L_R")
if PREFETCH:
    E(f"""    s_getpc_b64 s[60:61]
L_pcref:
    s_sub_u32 s60, s60, L_pcref-{NAME}
    s_subb_u32 s61, s61, 0
    s_lshr_b32 s11, s2, 3
    s_lshl_b32 s11, s11, 2
    s_add_u32 s11, s11, {sHW}
    s_lshl_b32 s11, s11, 7
    s_min_u32 s11, s11, L_end-{NAME}
    v_mov_b32 v2, s11
    s_mov_b64 exec, 1
    global_load_dword v110, v2, s[60:61]
    s_mov_b64 exec, -1""")
E(f"""    v_mov_b32 v4, 0
    v_lshlrev_b32 v8, 2, {vLANE}
    v_add_u32 v8, {SYNC}, v8
    ds_write_b32 v8, v4""")
qaddr_setup()
E(f"""    v_lshrrev_b32 v2, 3, {vLANE}
    v_add_u32 v4, {sROT}, v2
    v_and_b32 v4, 7, v4
    v_and_b32 v5, 7, {vLANE}
    v_lshlrev_b32 v6, 4, v5
    v_lshl_add_u32 v87, v4, 7, v6
    s_lshl_b32 s11, {sC}, 2
    s_add_u32 s11, s11, {sHW}
    s_and_b32 s12, s11, 7
    v_xor_b32 v5, s12, v5
    v_lshlrev_b32 v5, 4, v5
    v_lshl_add_u32 v5, v2, 13, v5
    s_lshl_b32 s11, s11, 8
    v_add_u32 v88, s11, v5
    s_lshl_b32 s11, {sHW}, 10
    s_add_u32 s11, s11, {LQX}
    v_add_u32 v86, s11, {vL16}
    s_waitcnt lgkmcnt(0)""")
srd(SWS, 38, WS_SIZE)
srd(ST, 36, 256)
E(f"""    s_xor_b32 s11, {sW}, 8
    s_or_b32 s11, s11, s2
    s_cmp_lg_u32 s11, 0
    s_cbranch_scc1 L_noepoch
    s_memrealtime s[12:13]
    v_mov_b32 v3, 0
    s_waitcnt lgkmcnt(0)
    s_or_b32 s12, s12, 1
    v_mov_b32 v2, s12
    s_mov_b64 exec, 1
    buffer_store_dword v2, v3, {ST}, 0 offen sc0 sc1
    s_mov_b64 exec, -1""")
L("L_noepoch")
srd(ST, 24, 1024)
srd(ST2, 32, 1024)
E(f"""    buffer_load_dwordx4 v[92:95], v87, {ST}, 0 offen
    buffer_load_dwordx4 v[96:99], v87, {ST2}, 0 offen""")
for i in range(8): E("    s_barrier")
E(f"""    ds_read_b128 v[100:103], v88
    ds_read_b128 v[104:107], v88 offset:128
    s_waitcnt lgkmcnt(0)
    s_barrier                             ; barrier A
    s_cmp_ge_u32 {sHW}, 2
    s_cbranch_scc1 L_noq1
    s_call_b64 {sRET2}, L_qtile""")
signal(SY_Q1)
L("L_noq1")
stamp(1)
get_tag()
E("    s_waitcnt lgkmcnt(0)")
for j in range(4): E(f"    v_mov_b32 v{32+j}, 0")
for q in range(4):
    for j, (xr, wr) in enumerate(((100, 92), (100, 96), (104, 92), (104, 96))):
        E(f"    v_dot2_f32_bf16 v{32+j}, v{xr+q}, v{wr+q}, v{32+j}")
E("    s_nop 2")
for dpp in ("quad_perm:[1,0,3,2] row_mask:0xf bank_mask:0xf", "quad_perm:[2,3,0,1] row_mask:0xf bank_mask:0xf",
            "row_half_mirror row_mask:0xf bank_mask:0xf", "row_mirror row_mask:0xf bank_mask:0xf",
            "row_bcast:15 row_mask:0xa bank_mask:0xf", "row_bcast:31 row_mask:0xc bank_mask:0xf"):
    for j in range(4):
        E(f"    v_add_f32_dpp v{32+j}, v{32+j}, v{32+j} {dpp}")
E(f"""    v_cvt_pk_bf16_f32 v36, v32, v34
    v_cvt_pk_bf16_f32 v37, v33, v35
    s_mov_b32 s11, {LOG2E:#x}
    v_lshlrev_b32 v38, 16, v37
    v_and_b32 v39, 0xffff0000, v37
    v_mul_f32 v38, s11, v38
    v_mul_f32 v39, s11, v39
    v_exp_f32 v38, -v38
    v_exp_f32 v39, -v39
    v_lshlrev_b32 v40, 16, v36
    v_and_b32 v41, 0xffff0000, v36
    v_add_f32 v38, 1.0, v38
    v_add_f32 v39, 1.0, v39
    v_rcp_f32 v38, v38
    v_rcp_f32 v39, v39
    v_ashrrev_i32 v42, 31, v40
    v_ashrrev_i32 v43, 31, v41
    v_cvt_pk_bf16_f32 v46, v38, v39
    v_or_b32 v42, 0x80000000, v42
    v_or_b32 v43, 0x80000000, v43
    v_xor_b32 v40, v40, v42
    v_xor_b32 v41, v41, v43
    v_and_b32 v40, 0xffff0000, v40
    v_and_b32 v41, 0xffff0000, v41
    s_lshl_b32 s11, {sB}, 5
    s_lshl_b32 s12, {sC}, 2
    s_add_u32 s11, s11, s12
    s_add_u32 s11, s11, {sHW}
    s_lshl_b32 s12, s11, 1
    s_sub_u32 s12, 2047, s12
    s_sub_u32 s13, s12, 1
    v_or_b32 v40, s12, v40
    v_or_b32 v41, s13, v41
    v_max_u32 v44, v40, v41
    v_mov_b32 v45, {sTAG}
    v_mov_b32 v47, {sTAG}
    s_lshl_b32 s11, s11, 4
    s_add_u32 s11, s11, {RG_OFF:#x}
    v_mov_b32 v3, s11
    s_mov_b32 exec_lo, 0
    s_mov_b32 exec_hi, 0x80000000
    buffer_store_dwordx4 v[44:47], v3, {SWS}, 0 offen sc1
    s_mov_b64 exec, -1""")
stamp(2)

RB = 72
def K(s): return f"v[{RB+12*s}:{RB+3+12*s}]"
def V0(s): return f"v[{RB+4+12*s}:{RB+7+12*s}]"
def V1(s): return f"v[{RB+8+12*s}:{RB+11+12*s}]"
L("L_att")
E(f"""    s_lshr_b32 s14, {sW}, 3               ; hs
    s_lshl_b32 s10, {sC}, 1
    s_add_u32 {sHB}, s10, s14
    s_lshl_b32 {sSOFF}, {sHB}, 17
    s_lshl_b32 s12, {sHW}, 15
    s_add_u32 {sSOFF}, {sSOFF}, s12
    s_mov_b32 s70, 0xffff
    s_mov_b32 s71, 0xffff
    v_mov_b32 {vIDX}, 0xdddddddd
    v_lshrrev_b32 v2, 5, {vLANE}
    v_and_b32 v3, 15, {vLANE}
    v_lshlrev_b32 v3, 4, v3
    v_lshl_add_u32 {vVA}, v2, 8, v3
    v_and_b32 v2, 7, {vLANE}
    v_bfe_u32 v3, {vLANE}, 3, 1
    v_lshl_add_u32 v2, v3, 5, v2
    s_lshl_b32 s12, {sG}, 6
    s_lshl_b32 s13, {sHW}, 3
    s_add_u32 s12, s12, s13
    v_add_u32 v2, s12, v2
    v_lshlrev_b32 v2, 7, v2
    v_add_u32 {vFL}, {FL_OFF:#x}, v2
    v_and_b32 v2, 31, {vLANE}
    v_cmp_eq_u32 vcc, 16, v2
    v_mov_b32 v2, 0x3f803f80
    s_lshl_b32 s10, s14, 11
    s_add_u32 s10, s10, {LQX}
    v_cndmask_b32 v156, 0, v2, vcc
    v_add_u32 v155, s10, {vL16}
    v_mov_b32 v157, v156""")
for j in range(6):
    for r in range(4, 12, 2):
        E(f"    v_mov_b64 v[{RB+12*j+r}:{RB+12*j+r+1}], v[156:157]")
lwait(SY_Q1, 2)
E(f"""    ds_read_b128 v[64:67], v155
    ds_read_b128 v[68:71], v155 offset:1024""")
poll_dword(vFL, vT0, "0xffff")
stamp(3)
def tile_loads(slot, odd):
    b = RB + 12 * slot
    o = 2048 if odd else 0
    E(f"""    buffer_load_dwordx4 v[{b}:{b+3}], {vL16}, {SWS}, {sSOFF} offen offset:{o} sc1
    s_mov_b64 exec, {sVM}
    buffer_load_dwordx4 v[{b+4}:{b+7}], {vVA}, {SWS}, {sSOFF} offen offset:{o+1024} sc1
    buffer_load_dwordx4 v[{b+8}:{b+11}], {vVA}, {SWS}, {sSOFF} offen offset:{o+1536} sc1
    s_mov_b64 exec, -1""")
for t in range(5):
    if t and t % 2 == 0:
        E(f"    s_add_u32 {sSOFF}, {sSOFF}, 0x1000")
    tile_loads(t, t & 1)
def round_init():
    for i in range(0, 10, 2):
        E(f"    v_mov_b64 v[{32+i}:{33+i}], 0")
        E(f"    v_mov_b64 v[{48+i}:{49+i}], 0")
    for i in range(24, 32, 2):
        E(f"    v_mov_b64 v[{i}:{i+1}], 0")
for i in range(10, 16, 2):
    E(f"    v_mov_b64 v[{32+i}:{33+i}], 0")
    E(f"    v_mov_b64 v[{48+i}:{49+i}], 0")
round_init()
E(f"""    s_mov_b32 {sRND}, 0
    s_mov_b32 {sIT}, 0
    s_mov_b32 {sSTEP3}, 0x1000
    s_mov_b32 {sSTEP5}, 0x1000
    s_setprio {PRIOS[0]}
    s_waitcnt vmcnt(12) lgkmcnt(0)
    v_mfma_f32_32x32x16_bf16 v[0:15], {K(0)}, v[64:67], 0""")
stamp(4)
E("    s_nop 11")
E(".p2align 6")
L("L_loop")
def ex(base, a, b):
    for i in range(a, b): E(f"    v_exp_f32 v{base+i}, v{base+i}")
for j in range(6):
    jp, jn = (j + 5) % 6, (j + 1) % 6
    if j == 4: L("L_pos4")
    ex(0, 0, 3)
    E(f"    v_smfmac_f32_32x32x32_bf16 v[48:63], {V1(jp)}, v[24:31], {vIDX}")
    ex(0, 3, 8)
    E(f"    v_mfma_f32_32x32x16_bf16 v[16:31], {K(j)}, v[68:71], 0")
    if j & 1:
        E(f"    s_add_u32 {sSOFF}, {sSOFF}, { {1: '0x1000', 3: sSTEP3, 5: sSTEP5}[j] }")
    tile_loads(jp, not (j & 1))
    ex(0, 8, 13)
    E(f"    v_smfmac_f32_32x32x32_bf16 v[32:47], {V0(j)}, v[0:7], {vIDX}")
    ex(0, 13, 16)
    ex(16, 0, 3)
    E(f"    v_smfmac_f32_32x32x32_bf16 v[32:47], {V1(j)}, v[8:15], {vIDX}")
    ex(16, 3, 8)
    E("    s_waitcnt vmcnt(12)")
    E(f"    v_mfma_f32_32x32x16_bf16 v[0:15], {K(jn)}, v[64:67], 0")
    ex(16, 8, 13)
    E(f"    v_smfmac_f32_32x32x32_bf16 v[48:63], {V0(j)}, v[16:23], {vIDX}")
    ex(16, 13, 16)
    if j == 1:
        E(f"    s_cmp_eq_u32 {sIT}, 5\n    s_cbranch_scc1 L_end1")
    if j == 3:
        E(f"    s_cmp_eq_u32 {sIT}, 2\n    s_cbranch_scc1 L_end0")
E(f"""    s_add_u32 {sIT}, {sIT}, 1
    s_mov_b32 {sSTEP5}, 0x1000
    s_cmp_eq_u32 {sIT}, 4
    s_cselect_b32 {sSTEP3}, {OOB:#x}, {sSTEP5}""")
for it in range(2, 6):
    if PRIOS[it] != PRIOS[it-1]:
        l = newlab("pr")
        E(f"    s_cmp_lg_u32 {sIT}, {it}\n    s_cbranch_scc1 {l}\n    s_setprio {PRIOS[it]}\n    s_branch L_loop")
        L(l)
E(f"""    s_cmp_lg_u32 {sIT}, 1
    s_cbranch_scc1 L_loop
    s_setprio {PRIOS[1]}""")
lwait(SY_KVOK, 1)
E(f"""    s_mov_b32 {sSTEP5}, {16*0x20000 - 0x7000:#x}
    s_branch L_loop""")
L("L_end0")
E(f"""    v_smfmac_f32_32x32x32_bf16 v[48:63], {V1(3)}, v[24:31], {vIDX}
    s_branch L_rend""")
L("L_end1")
E(f"    v_smfmac_f32_32x32x32_bf16 v[48:63], {V1(1)}, v[24:31], {vIDX}")
L("L_rend")
E(f"""    s_lshl_b32 s69, s14, 3
    s_add_u32 s10, s69, {SY_FIN}
    s_cmp_eq_u32 {sRND}, 0
    s_cselect_b32 {sWA}, {SY_Q2}, s10
    s_cselect_b32 {sWN}, 2, 1
    s_call_b64 {sRET}, L_lwait
    s_lshl_b32 s10, {sRND}, 2
    s_add_u32 s69, s69, s10
    s_cmp_eq_u32 s14, 0
    s_mov_b32 s79, {LG}
    s_cselect_b32 s79, {LACC}, s79
    s_mul_i32 s11, {sHW}, {ACC_SZ}
    s_add_u32 s11, s11, s79
    v_add_u32 {vT0}, s11, {vL16}
    v_lshl_add_u32 {vT1}, {vLANE}, 2, s11
    s_add_u32 s10, s69, {SY_RED}
    v_mov_b32 {vT2}, s10
    v_mov_b32 {vT3}, 1
    ds_write_b128 {vT0}, v[32:35]
    ds_write_b128 {vT0}, v[36:39] offset:1024
    ds_write_b32 {vT1}, v40 offset:2048
    ds_write_b128 {vT0}, v[48:51] offset:2304
    ds_write_b128 {vT0}, v[52:55] offset:3328
    ds_write_b32 {vT1}, v56 offset:4352
    s_waitcnt lgkmcnt(0)
    s_mov_b64 exec, 1
    ds_add_rtn_u32 {vT3}, {vT2}, {vT3}
    s_mov_b64 exec, -1
    v_add_u32 {vT0}, s79, {vL16}
    v_and_b32 {vT1}, 31, {vLANE}
    v_lshl_add_u32 {vT1}, {vT1}, 2, s79
    s_lshl_b32 s61, {sB}, 16
    s_lshl_b32 s10, {sHB}, 10
    s_add_u32 s61, s61, s10
    s_add_u32 s61, s61, {O_OFF:#x}
    s_mov_b32 s62, 0
    s_waitcnt lgkmcnt(0)
    v_readfirstlane_b32 s10, {vT3}
    s_cmp_lg_u32 s10, 3
    s_cbranch_scc1 L_nofin""")
L("L_fin")
for q in range(4):
    E(f"""    ds_read_b128 v[{12*q}:{12*q+3}], {vT0} offset:{q*ACC_SZ}
    ds_read_b128 v[{12*q+4}:{12*q+7}], {vT0} offset:{q*ACC_SZ+1024}
    ds_read_b32 v{12*q+8}, {vT1} offset:{q*ACC_SZ+2048}""")
E(f"""    s_mov_b32 s10, {f2u(2.0**-40):#x}
    s_mov_b32 s11, {f2u(2.0**60):#x}
    s_waitcnt lgkmcnt(6)""")
for i in range(0, 8, 2): E(f"    v_pk_add_f32 v[{i}:{i+1}], v[{i}:{i+1}], v[{12+i}:{13+i}]")
E("    v_add_f32 v8, v8, v20\n    s_waitcnt lgkmcnt(0)")
for i in range(0, 8, 2): E(f"    v_pk_add_f32 v[{24+i}:{25+i}], v[{24+i}:{25+i}], v[{36+i}:{37+i}]")
E("    v_add_f32 v32, v32, v44")
for i in range(0, 8, 2): E(f"    v_pk_add_f32 v[{48+i}:{49+i}], v[{i}:{i+1}], v[{24+i}:{25+i}]")
E(f"""    v_add_f32 v56, v8, v32
    v_pk_add_f32 v[0:1], v[48:49], v[50:51]
    v_pk_add_f32 v[2:3], v[52:53], v[54:55]
    v_mov_b32 v4, 0x207
    v_pk_add_f32 v[0:1], v[0:1], v[2:3]
    v_cmp_nle_f32 s[12:13], s10, v56
    v_add_f32 v0, v0, v1
    v_cmp_nge_f32 s[64:65], s11, v56
    v_cmp_class_f32 vcc, v0, v4
    s_or_b64 s[12:13], s[12:13], s[64:65]
    s_or_b64 vcc, vcc, s[12:13]""")
if FORCE_FB:
    E("    s_mov_b64 vcc, -1")
E("    s_cbranch_vccnz L_fallback")
L("L_norm")
E("    v_rcp_f32 v57, v56\n    s_nop 0")
for i in range(8): E(f"    v_mul_f32 v{48+i}, v{48+i}, v57")
for i in range(4): E(f"    v_cvt_pk_bf16_f32 v{4+i}, v{48+2*i}, v{49+2*i}")
E(f"""    buffer_store_dwordx4 v[4:7], {vL16}, {SWS}, s61 offen sc1
    v_add_u32 {vT0}, 2304, {vT0}
    v_add_u32 {vT1}, 2304, {vT1}
    s_add_u32 s61, s61, 0x8000
    s_add_u32 s62, s62, 1
    s_cmp_lt_u32 s62, 2
    s_cbranch_scc1 L_fin
    s_lshl_b32 s10, {sB}, 5
    s_add_u32 s10, s10, {sHB}
    s_lshl_b32 s10, s10, 7
    s_add_u32 s10, s10, {OFL_OFF:#x}
    s_add_u32 s11, s69, {SY_FIN}
    v_mov_b32 v0, {sTAG}
    v_mov_b32 v1, s10
    v_mov_b32 v2, s11
    v_mov_b32 v3, 1
    s_waitcnt vmcnt(0)
    s_mov_b64 exec, 1
    buffer_store_dword v0, v1, {SWS}, 0 offen sc1
    ds_add_u32 v2, v3
    s_mov_b64 exec, -1""")
L("L_nofin")
E(f"""    s_cmp_lg_u32 {sRND}, 0
    s_cbranch_scc1 L_attdone
    s_mov_b32 {sRND}, 1
    s_add_u32 {sHB}, {sHB}, 16""")
E(f"""    ds_read_b128 v[64:67], v155 offset:4096
    ds_read_b128 v[68:71], v155 offset:5120""")
round_init()
for i in range(10, 16, 2):
    E(f"    v_mov_b64 v[{32+i}:{33+i}], 0")
    E(f"    v_mov_b64 v[{48+i}:{49+i}], 0")
stamp(5)
E(f"""    s_waitcnt lgkmcnt(0)
    v_mfma_f32_32x32x16_bf16 v[0:15], {K(4)}, v[64:67], 0
    s_nop 10
    s_branch L_pos4""")

L("L_fallback")
E(f"""    s_cmp_eq_u32 s62, 0
    s_cselect_b64 vcc, -1, 0
    v_cndmask_b32 v44, v68, v64, vcc
    v_cndmask_b32 v45, v69, v65, vcc
    v_cndmask_b32 v46, v70, v66, vcc
    v_cndmask_b32 v47, v71, v67, vcc
    v_mov_b32 v48, 0xff800000
    s_lshl_b32 s10, {sHB}, 17
    s_mov_b32 s11, 64""")
L("L_fb1")
E(f"""    buffer_load_dwordx4 v[32:35], {vL16}, {SWS}, s10 offen sc1
    s_add_u32 s10, s10, 0x800
    s_waitcnt vmcnt(0)
    v_mfma_f32_32x32x16_bf16 v[0:15], v[32:35], v[44:47], 0
    s_nop 12""")
for i in range(0, 16, 2): E(f"    v_max3_f32 v48, v{i}, v{i+1}, v48")
E(f"""    s_sub_u32 s11, s11, 1
    s_cmp_lg_u32 s11, 0
    s_cbranch_scc1 L_fb1
    v_mov_b32 v49, v48
    s_nop 1
    v_permlane32_swap_b32 v48, v49
    s_nop 1
    v_max_f32 v48, v48, v49""")
for i in range(16): E(f"    v_xor_b32 v{16+i}, 0x80000000, v48")
for i in range(0, 16, 2): E(f"    v_mov_b64 v[{48+i}:{49+i}], 0")
for i in range(36, 44): E(f"    v_mov_b32 v{i}, 0x3f803f80")
E(f"""    s_lshl_b32 s10, {sHB}, 17
    s_mov_b32 s11, 64""")
L("L_fb2")
E(f"""    buffer_load_dwordx4 v[32:35], {vL16}, {SWS}, s10 offen sc1
    s_mov_b64 exec, {sVM}
    buffer_load_dwordx4 v[36:39], {vVA}, {SWS}, s10 offen offset:1024 sc1
    buffer_load_dwordx4 v[40:43], {vVA}, {SWS}, s10 offen offset:1536 sc1
    s_mov_b64 exec, -1
    s_add_u32 s10, s10, 0x800
    s_waitcnt vmcnt(0)
    v_mfma_f32_32x32x16_bf16 v[0:15], v[32:35], v[44:47], v[16:31]
    s_nop 12""")
ex(0, 0, 16)
E(f"""    s_nop 1
    v_smfmac_f32_32x32x32_bf16 v[48:63], v[36:39], v[0:7], {vIDX}
    v_smfmac_f32_32x32x32_bf16 v[48:63], v[40:43], v[8:15], {vIDX}
    s_sub_u32 s11, s11, 1
    s_cmp_lg_u32 s11, 0
    s_cbranch_scc1 L_fb2
    s_nop 12
    s_branch L_norm""")

L("L_attdone")
stamp(6)
L("L_exit")
if DIAG:
    stamp(7)
    E(f"""    s_mul_i32 s10, s2, 12
    s_add_u32 s10, s10, {sW}
    s_lshl_b32 s10, s10, 7
    s_add_u32 s10, s10, {STAMP_OFF:#x}
    v_lshlrev_b32 v2, 2, {vLANE}
    s_mov_b32 exec_hi, 0
    buffer_store_dword {vSTAMP}, v2, {SWS}, s10 offen""")
if DIAG and "--dbgout" in sys.argv:
    srd(ST, 36, 256)
    E(f"""    s_mov_b64 exec, -1
    v_readlane_b32 s10, {vSTAMP}, 16
    v_readlane_b32 s11, {vSTAMP}, 23
    s_not_b32 s10, s10
    v_mov_b32 v2, s10
    v_mov_b32 v3, s11
    v_mov_b32 v4, 4
    v_mov_b32 v5, 8
    s_mov_b64 exec, 1
    s_cmp_lg_u32 {sW}, 0
    s_cbranch_scc1 L_dbg1
    buffer_atomic_umax v2, v4, {ST}, 0 offen
    buffer_atomic_umax v3, v5, {ST}, 0 offen
L_dbg1:
    s_cmp_lg_u32 s2, 100
    s_cbranch_scc1 L_end
    s_cmp_lg_u32 {sW}, 4
    s_cbranch_scc1 L_end
    s_mov_b64 exec, -1
    v_lshlrev_b32 v2, 2, {vLANE}
    v_subrev_u32 v2, 48, v2
    s_mov_b64 exec, 0xff0000
    buffer_store_dword {vSTAMP}, v2, {ST}, 0 offen""")
L("L_end")
E(f"""    s_endpgm
.section .rodata,"a"
.p2align 6
.amdhsa_kernel {NAME}
  .amdhsa_next_free_vgpr 168
  .amdhsa_next_free_sgpr 96
  .amdhsa_accum_offset 168
  .amdhsa_group_segment_fixed_size 0
  .amdhsa_kernarg_size 96
  .amdhsa_user_sgpr_count 2
  .amdhsa_user_sgpr_kernarg_segment_ptr 1
  .amdhsa_system_sgpr_workgroup_id_x 1
.end_amdhsa_kernel""")

txt = "\n".join(out) + "\n"
dst = [a for a in sys.argv[1:] if not a.startswith("--")]
open(dst[0] if dst else "gated_mix__mha_block__moe_arch_mod__prompt.s", "w").write(txt)
```

```python
import sys, struct

NAME = "gated_mix__mha_block__moe_arch_mod__prompt_kernel"
DIAG = "--diag" in sys.argv
FORCE_FB = "--forcefb" in sys.argv
def opt(name, default):
    for a in sys.argv:
        if a.startswith(f"--{name}="): return a.split("=", 1)[1]
    return default
PRIOS = [int(c) for c in opt("prios", "332210")]
PREFETCH = int(opt("pf", "1"))

KV_OFF, O_OFF = 0, 0x400000
FL_OFF, OFL_OFF, RG_OFF, SEL_OFF, YP_OFF, PA_OFF = 0x800000, 0x810000, 0x830000, 0x834000, 0x838000, 0x868000
STAMP_OFF = 0x900000
WS_SIZE = 0xA00000
OOB = 0x4000000
LX, LG, SCR = 0, 65536, 131072
LQX = SCR
LACC = SCR + 8192
ACC_SZ = 4608
SYNC = LACC + 4 * ACC_SZ
MISC = SYNC + 256
LMOE = LG + 32768
SY_RED = SYNC
SY_FIN = SYNC + 16
SY_KV0 = SYNC + 32
SY_KV1 = SYNC + 36
SY_Q1 = SYNC + 40
SY_Q2 = SYNC + 44
SY_G2L = SYNC + 48
SY_G2D = SYNC + 52
SY_WQ2 = SYNC + 56
SY_WO = SYNC + 60
SY_KVOK = SYNC + 64

def f2u(x): return struct.unpack("<I", struct.pack("<f", x))[0]
QSCALE = f2u(0.25 * 1.4426950408889634)
LOG2E = f2u(1.4426950408889634)

out = []
def E(s=""):
    for ln in s.split("\n"):
        out.append(ln)
def L(name): out.append(name + ":")

sW, sG, sTY, sB, sC, sROT, sTAG, sHW = "s3", "s4", "s5", "s6", "s7", "s8", "s9", "s15"
SX, SWQ, SWS, ST, ST2 = "s[40:43]", "s[44:47]", "s[48:51]", "s[52:55]", "s[56:59]"
sVM = "s[70:71]"
sSOFF, sSTEP3, sSTEP5, sIT, sSPIN, sHB, sRND = "s72", "s73", "s74", "s75", "s76", "s77", "s78"
sRET, sRET2 = "s[80:81]", "s[82:83]"
sWA, sWN = "s88", "s89"
vLANE, vL16, vIDX, vVA = "v167", "v166", "v165", "v164"
vT0, vT1, vT2, vT3 = "v160", "v161", "v162", "v163"
vSTAMP = "v159"
vFL = "v158"

def stamp(i):
    if not DIAG: return
    E(f"""    s_memtime s[84:85]
    s_memrealtime s[86:87]
    s_waitcnt lgkmcnt(0)
    v_writelane_b32 {vSTAMP}, s84, {i}
    v_writelane_b32 {vSTAMP}, s86, {16+i}""")

def srd(reg, plo, size):
    n = int(reg[2:reg.index(":")])
    E(f"""    s_mov_b32 s{n}, s{plo}
    s_mov_b32 s{n+1}, s{plo+1}
    s_mov_b32 s{n+2}, {size:#x}
    s_mov_b32 s{n+3}, 0x20000""")

SPIN_MAX = 40000
lab = [0]
def newlab(p="L"):
    lab[0] += 1
    return f"{p}_{lab[0]}"

def poll_dword(vaddr, vdst, execmask=None, sleep=2):
    l0, l1 = newlab("poll"), newlab("polldone")
    if execmask: E(f"    s_mov_b64 exec, {execmask}")
    E(f"    s_mov_b32 {sSPIN}, 0")
    L(l0)
    E(f"""    buffer_load_dword {vdst}, {vaddr}, {SWS}, 0 offen sc1
    s_add_u32 {sSPIN}, {sSPIN}, 1
    s_waitcnt vmcnt(0)
    v_cmp_ne_u32 vcc, {sTAG}, {vdst}
    s_cbranch_vccz {l1}
    s_sleep {sleep}
    s_cmp_lt_u32 {sSPIN}, {SPIN_MAX}
    s_cbranch_scc1 {l0}""")
    L(l1)
    if execmask: E("    s_mov_b64 exec, -1")

def signal(addr):
    E(f"""    v_mov_b32 {vT2}, {addr}
    v_mov_b32 {vT3}, 1
    s_mov_b64 exec, 1
    ds_add_u32 {vT2}, {vT3}
    s_mov_b64 exec, -1""")
def lwait(addr, n):
    E(f"""    s_mov_b32 {sWA}, {addr}
    s_mov_b32 {sWN}, {n}
    s_call_b64 {sRET}, L_lwait""")
def get_tag():
    l0, l1 = newlab("tag"), newlab("tagok")
    srd(ST, 36, 256)
    E(f"""    v_mov_b32 {vT1}, 0
    s_mov_b32 {sSPIN}, 0""")
    L(l0)
    E(f"""    buffer_load_dword {vT0}, {vT1}, {ST}, 0 offen sc0 sc1
    s_add_u32 {sSPIN}, {sSPIN}, 1
    s_waitcnt vmcnt(0)
    v_readfirstlane_b32 {sTAG}, {vT0}
    s_cmp_ge_u32 {sSPIN}, {SPIN_MAX}
    s_cbranch_scc1 {l1}
    s_cmp_eq_u32 {sTAG}, 0
    s_cbranch_scc1 {l0}""")
    L(l1)
def publish_flag_last(counter, s_addr):
    l = newlab("nofl")
    E(f"""    v_mov_b32 {vT2}, {counter}
    v_mov_b32 {vT3}, 1
    v_mov_b32 {vT0}, {sTAG}
    v_mov_b32 {vT1}, {s_addr}
    s_mov_b64 exec, 1
    ds_add_rtn_u32 {vT3}, {vT2}, {vT3}
    s_waitcnt lgkmcnt(0)
    v_cmp_eq_u32 vcc, 3, {vT3}
    s_cbranch_vccz {l}
    buffer_store_dword {vT0}, {vT1}, {SWS}, 0 offen sc1""")
    L(l)
    E("    s_mov_b64 exec, -1")
def zero_acc(base=0):
    for i in range(0, 16, 2):
        E(f"    v_mov_b64 v[{base+i}:{base+i+1}], 0")
def xaddr_setup():
    E(f"""    v_and_b32 v2, 31, {vLANE}
    v_lshrrev_b32 v3, 5, {vLANE}
    v_bfe_u32 v4, {vLANE}, 1, 3
    v_xor_b32 v4, v4, v3
    v_lshlrev_b32 v4, 4, v4
    v_lshl_add_u32 v80, v2, 7, v4
    s_and_b32 s11, {sHW}, 1
    s_lshl_b32 s11, s11, 12
    v_add_u32 v80, s11, v80
    v_xor_b32 v81, 32, v80
    v_xor_b32 v82, 64, v80
    v_xor_b32 v83, 0x60, v80""")
def gaddr_setup():
    E(f"""    s_lshr_b32 s68, {sHW}, 1
    v_bfe_u32 v2, {vLANE}, 2, 2
    v_lshrrev_b32 v3, 5, {vLANE}
    v_lshl_add_u32 v4, v3, 3, v2
    v_lshlrev_b32 v4, 7, v4
    v_lshrrev_b32 v2, 1, v2
    v_xor_b32 v2, s68, v2
    v_lshl_add_u32 v4, v2, 6, v4
    v_bfe_u32 v5, {vLANE}, 4, 1
    v_lshl_add_u32 v4, v5, 5, v4
    v_and_b32 v2, 3, {vLANE}
    v_lshl_add_u32 v4, v2, 3, v4
    v_add_u32 v84, {LG:#x}, v4
    v_and_b32 v2, 0x33, {vLANE}
    v_bfe_u32 v4, {vLANE}, 2, 1
    v_lshl_or_b32 v2, v4, 3, v2
    v_bfe_u32 v4, {vLANE}, 3, 1
    v_lshl_or_b32 v2, v4, 2, v2
    v_lshlrev_b32 v85, 4, v2
    v_and_b32 v2, 15, {vLANE}
    v_lshlrev_b32 v2, 4, v2
    v_lshl_add_u32 v2, v3, 8, v2
    v_lshl_add_u32 v4, v5, 17, v2
    v_add_u32 v4, 0x400, v4
    s_cmp_eq_u32 {sTY}, 1
    s_cselect_b64 vcc, -1, 0
    s_movk_i32 s67, 0x200
    s_cselect_b32 s67, s67, 0x20000
    v_cndmask_b32 v85, v85, v4, vcc
    s_lshl_b32 s66, {sG}, 1
    s_add_u32 s66, s66, s68
    s_lshl_b32 s66, s66, 18
    s_lshl_b32 s11, {sB}, 1
    s_and_b32 s12, {sHW}, 1
    s_add_u32 s11, s11, s12
    s_lshl_b32 s11, s11, 11
    s_add_u32 s66, s66, s11
    s_lshl_b32 s65, {sC}, 5
    s_add_u32 s65, s65, {sB}
    s_lshl_b32 s65, s65, 7
    s_add_u32 s65, s65, {FL_OFF:#x}""")
def qaddr_setup():
    E(f"""    v_bfe_u32 v2, {vLANE}, 2, 2
    v_lshrrev_b32 v3, 5, {vLANE}
    v_lshl_add_u32 v2, v3, 3, v2
    v_lshlrev_b32 v2, 6, v2
    v_bfe_u32 v3, {vLANE}, 4, 1
    v_lshl_add_u32 v2, v3, 5, v2
    v_and_b32 v3, 3, {vLANE}
    v_lshl_add_u32 v2, v3, 3, v2
    v_add_u32 v84, {LG:#x}, v2""")
def kv_store():
    for i in range(8):
        E(f"    v_cvt_pk_bf16_f32 v{16+i}, v{2*i}, v{2*i+1}")
    E(f"""    s_add_u32 s11, s66, s67
    buffer_store_dwordx4 v[16:19], v85, {SWS}, s66 offen sc1
    buffer_store_dwordx4 v[20:23], v85, {SWS}, s11 offen sc1""")

E(f"""; fused gated-mix(MHA, top-1 MoD FFN): QKV GEMM -> attention -> out-proj + mix in one launch
; @launch grid=(256,1,1) block=(768,1,1) lds=163840
.amdgcn_target "amdgcn-amd-amdhsa--gfx950"
.text
.globl {NAME}
.p2align 8
.type {NAME},@function
{NAME}:
    {"s_memrealtime s[90:91]" if "--own" in sys.argv else ""}
    s_load_dwordx16 s[16:31], s[0:1], 0
    s_load_dwordx8 s[32:39], s[0:1], 64
    s_cmp_ge_u32 s2, 256
    s_cbranch_scc1 L_end
    v_lshrrev_b32 v1, 6, v0
    v_and_b32 {vLANE}, 63, v0
    s_lshr_b32 s11, s2, 3                ; slot
    s_bfe_u32 {sG}, s2, 0x20001          ; (wg>>1)&3
    v_readfirstlane_b32 {sW}, v1
    s_and_b32 {sTY}, s11, 1
    s_and_b32 s12, s2, 1
    s_lshl_b32 s12, s12, 4
    s_lshr_b32 s13, s11, 1
    s_or_b32 {sB}, s12, s13
    s_lshl_b32 s12, {sTY}, 2
    s_add_u32 {sROT}, s13, s12
    s_and_b32 {sROT}, {sROT}, 7
    s_and_b32 {sHW}, {sW}, 3""")
if DIAG:
    E(f"    v_mov_b32 {vSTAMP}, 0")
    stamp(0)
E(f"""    s_cmp_ge_u32 {sW}, 4
    s_cbranch_scc1 L_FR""")

E(f"""    s_setprio 3
    v_lshrrev_b32 v2, 3, {vLANE}
    v_and_b32 v3, 7, {vLANE}
    v_lshrrev_b32 v4, 4, {vLANE}
    v_xor_b32 v5, v3, v4
    v_lshlrev_b32 v5, 4, v5
    v_lshl_add_u32 v90, v2, 10, v5        ; x even
    v_xor_b32 v91, 64, v90
    v_add_u32 v91, 0x2000, v91            ; x odd
    v_and_b32 v4, 1, v4
    v_lshlrev_b32 v4, 2, v4
    v_xor_b32 v5, v3, v4
    v_lshlrev_b32 v95, 4, v5
    v_mov_b32 v6, 0xc00
    v_mad_u32_u24 v92, v2, v6, v95        ; g even
    v_add_u32 v93, 0x6000, v92            ; g odd
    s_lshl_b32 s60, {sB}, 16
    s_lshl_b32 s61, {sW}, 14
    s_add_u32 s60, s60, s61
    s_lshl_b32 s61, {sTY}, 10
    s_lshl_b32 s62, {sG}, 7
    s_add_u32 s61, s61, s62
    s_mul_i32 s63, {sW}, 0xc000
    s_add_u32 s64, s61, s63
    s_add_u32 s64, s64, 0x400
    s_lshl_b32 s69, {sW}, 11
    s_mov_b32 s14, {sROT}
    s_mov_b32 s10, 0
    s_mov_b32 s42, 0x200000
    s_mov_b32 s43, 0x20000
    s_mov_b32 s46, 0x180000
    s_mov_b32 s47, 0x20000
    s_waitcnt lgkmcnt(0)
    s_mov_b64 s[40:41], s[16:17]
    s_mov_b64 s[44:45], s[18:19]""")
L("L_dma1")
E(f"""    s_lshl_b32 s11, s14, 7
    s_add_u32 s11, s11, s60
    s_mul_i32 s12, s14, 0x30000
    s_add_u32 s12, s12, s64
    s_mov_b32 m0, s69
    s_add_u32 s14, s14, 1
    buffer_load_dwordx4 v90, {SX}, s11 offen lds
    s_add_u32 m0, s69, 0x400
    s_and_b32 s14, s14, 7
    buffer_load_dwordx4 v91, {SX}, s11 offen lds
    s_add_u32 m0, s69, {LG:#x}
    s_add_u32 s10, s10, 1
    buffer_load_dwordx4 v92, {SWQ}, s12 offen lds
    s_add_u32 m0, s69, {LG+0x400:#x}
    s_add_u32 s69, s69, 0x2000
    buffer_load_dwordx4 v93, {SWQ}, s12 offen lds
    s_cmp_lt_u32 s10, 4
    s_cbranch_scc1 L_dma1
    s_waitcnt vmcnt(12)
    s_barrier
    s_cmp_lt_u32 s10, 8
    s_cbranch_scc1 L_dma1
    v_lshrrev_b32 v2, 2, {vLANE}
    v_and_b32 v3, 3, {vLANE}
    v_lshlrev_b32 v3, 4, v3
    v_mad_u32_u24 v94, v2, v6, v3
    s_lshl_b32 s61, {sTY}, 6
    s_add_u32 s61, s61, s62
    s_add_u32 s79, s61, s63
    s_lshl_b32 s69, {sW}, 10
    s_add_u32 s69, s69, {LG:#x}
    s_mov_b32 s10, 0""")
L("L_dmaq")
E(f"""    s_mul_i32 s12, s14, 0x30000
    s_add_u32 s12, s12, s79
    s_mov_b32 m0, s69
    s_add_u32 s14, s14, 1
    s_and_b32 s14, s14, 7
    buffer_load_dwordx4 v94, {SWQ}, s12 offen lds
    s_add_u32 s69, s69, 0x1000
    s_add_u32 s10, s10, 1
    s_and_b32 s11, s10, 3
    s_cbranch_scc1 L_dmaq
    s_waitcnt vmcnt(12)
    s_barrier
    s_cmp_lt_u32 s10, 8
    s_cbranch_scc1 L_dmaq
    s_waitcnt vmcnt(8)
    s_barrier
    s_lshl_b32 {sC}, {sG}, 1
    s_or_b32 {sC}, {sC}, {sTY}
    v_lshlrev_b32 {vL16}, 4, {vLANE}""")
srd(SWS, 38, WS_SIZE)
xaddr_setup()
gaddr_setup()
E(f"""    s_add_u32 s66, s66, 0x200000
    s_add_u32 s65, s65, 0x8000
    s_add_u32 s64, s64, 0x200
    s_add_u32 s79, s79, 0x200
    s_waitcnt vmcnt(0)
    s_barrier                             ; barrier A""")
stamp(1)
E(f"""    s_xor_b32 s14, s14, 4
    s_lshl_b32 s69, {sW}, 11
    s_add_u32 s69, s69, {LG+0x8000:#x}
    s_mov_b32 s10, 0""")
L("L_dmag2")
E(f"""    s_mul_i32 s12, s14, 0x30000
    s_add_u32 s12, s12, s64
    s_mov_b32 m0, s69
    s_add_u32 s14, s14, 1
    s_and_b32 s14, s14, 7
    buffer_load_dwordx4 v92, {SWQ}, s12 offen lds
    s_add_u32 m0, s69, 0x400
    s_add_u32 s69, s69, 0x2000
    s_add_u32 s10, s10, 1
    buffer_load_dwordx4 v93, {SWQ}, s12 offen lds
    s_and_b32 s11, s10, 3
    s_cbranch_scc1 L_dmag2
    s_cmp_eq_u32 s10, 8
    s_cbranch_scc1 L_g2issued""")
lwait(SY_Q1, 2)
E(f"""    s_sub_u32 s69, s69, 0x10000
    s_branch L_dmag2""")
L("L_g2issued")
E(f"    s_xor_b32 s14, s14, 4")
get_tag()
signal(SY_G2L)
lwait(SY_G2L, 4)
stamp(2)
E(f"""    s_cmp_eq_u32 {sTY}, 1
    s_cbranch_scc1 L_g2V
    s_call_b64 {sRET}, L_pgemmK
    s_branch L_g2E""")
L("L_g2V")
E(f"    s_call_b64 {sRET}, L_pgemmV")
L("L_g2E")
kv_store()
signal(SY_G2D)
lwait(SY_G2D, 4)
E(f"""    s_lshl_b32 s69, {sW}, 10
    s_add_u32 s69, s69, {LG:#x}
    s_mov_b32 s10, 0
    s_waitcnt vmcnt(0)""")
publish_flag_last(SY_KV1, "s65")
L("L_dmaq2")
E(f"""    s_mul_i32 s12, s14, 0x30000
    s_add_u32 s12, s12, s79
    s_mov_b32 m0, s69
    s_add_u32 s14, s14, 1
    s_and_b32 s14, s14, 7
    buffer_load_dwordx4 v94, {SWQ}, s12 offen lds
    s_add_u32 s69, s69, 0x1000
    s_add_u32 s10, s10, 1
    s_cmp_lt_u32 s10, 8
    s_cbranch_scc1 L_dmaq2
    s_waitcnt vmcnt(0)""")
signal(SY_WQ2)
stamp(3)
E(f"""    s_cmp_eq_u32 {sW}, 2
    s_cbranch_scc1 L_moe
    s_cmp_eq_u32 {sW}, 3
    s_cbranch_scc1 L_h3""")
xaddr_setup()
qaddr_setup()
lwait(SY_WQ2, 4)
E(f"""    s_lshl_b32 s11, {sW}, 10
    s_add_u32 s11, s11, {LQX+4096}
    v_add_u32 v86, s11, {vL16}
    s_call_b64 {sRET2}, L_qtile""")
signal(SY_Q2)
lwait(SY_Q2, 2)
srd(ST, 20, 0x80000)
E(f"""    v_lshrrev_b32 v2, 3, {vLANE}
    v_lshl_add_u32 v2, v2, 10, v95
    s_lshl_b32 s10, {sW}, 18
    s_lshl_b32 s11, {sC}, 7
    s_add_u32 s10, s10, s11
    s_lshl_b32 s11, {sW}, 15
    s_mov_b32 s12, 32""")
L("L_dmawo")
E(f"""    s_mov_b32 m0, s11
    s_add_u32 s11, s11, 0x400
    buffer_load_dwordx4 v2, {ST}, s10 offen lds
    s_add_u32 s10, s10, 0x2000
    s_sub_u32 s12, s12, 1
    s_waitcnt vmcnt(3)
    s_cmp_lg_u32 s12, 0
    s_cbranch_scc1 L_dmawo
    s_waitcnt vmcnt(0)""")
signal(SY_WO)
E("    s_branch L_outproj")
L("L_h3")
E(f"""    s_lshl_b32 s11, {sG}, 13
    s_add_u32 s11, s11, {FL_OFF+0x8000:#x}
    v_lshlrev_b32 v2, 7, {vLANE}
    v_add_u32 v2, s11, v2""")
poll_dword("v2", "v3", None, sleep=8)
signal(SY_KVOK)
E("    s_branch L_outproj")

L("L_moe")
E(f"""    v_bfe_u32 v2, {vLANE}, 2, 2
    v_lshrrev_b32 v3, 5, {vLANE}
    v_lshl_add_u32 v100, v3, 3, v2        ; 8hh+r
    v_bfe_u32 v5, {vLANE}, 4, 1
    v_and_b32 v6, 3, {vLANE}
    v_lshlrev_b32 v6, 3, v6
    v_lshl_add_u32 v101, v5, 5, v6
    v_lshlrev_b32 v102, 4, v3             ; hh*16
    v_lshlrev_b32 v103, 3, {vLANE}        ; lane*8
    s_cmp_lt_u32 s2, 172
    s_cbranch_scc1 L_moeA
    s_cmp_lt_u32 s2, 215
    s_cbranch_scc1 L_moeB
    s_cmp_lg_u32 s2, 255
    s_cbranch_scc1 L_outproj
    ; ---- argmax over the router keys ----
    s_mov_b32 {sSPIN}, 0""")
L("L_keys")
E(f"    s_mov_b32 s10, {RG_OFF:#x}")
for i in range(16):
    E(f"    buffer_load_dwordx2 v[{16+2*i}:{17+2*i}], {vL16}, {SWS}, s10 offen offset:{(i%4)*1024} sc1")
    if i % 4 == 3: E("    s_add_u32 s10, s10, 0x1000")
E(f"""    s_add_u32 {sSPIN}, {sSPIN}, 1
    v_mov_b32 v2, 0
    v_mov_b32 v3, 0
    s_waitcnt vmcnt(0)""")
for i in range(16):
    E(f"""    v_xor_b32 v{17+2*i}, {sTAG}, v{17+2*i}
    v_max_u32 v2, v2, v{16+2*i}
    v_or_b32 v3, v3, v{17+2*i}""")
E(f"""    v_cmp_ne_u32 vcc, 0, v3
    s_cbranch_vccz L_keysok
    s_sleep 8
    s_cmp_lt_u32 {sSPIN}, {SPIN_MAX}
    s_cbranch_scc1 L_keys""")
L("L_keysok")
for dpp in ("quad_perm:[1,0,3,2] row_mask:0xf bank_mask:0xf", "quad_perm:[2,3,0,1] row_mask:0xf bank_mask:0xf",
            "row_half_mirror row_mask:0xf bank_mask:0xf", "row_mirror row_mask:0xf bank_mask:0xf",
            "row_bcast:15 row_mask:0xa bank_mask:0xf", "row_bcast:31 row_mask:0xc bank_mask:0xf"):
    E(f"    s_nop 1\n    v_max_u32_dpp v2, v2, v2 {dpp}")
E(f"""    v_mov_b32 v3, {sTAG}
    v_mov_b32 v4, {SEL_OFF:#x}
    s_mov_b32 exec_lo, 0
    s_mov_b32 exec_hi, 0x80000000
    buffer_store_dwordx2 v[2:3], v4, {SWS}, 0 offen sc1
    s_mov_b64 exec, -1
    s_branch L_outproj""")
L("L_moeA")
srd(ST, 26, 512*2752)
srd(ST2, 28, 512*2752)
E(f"""    s_mul_i32 s60, s2, 1525
    s_lshr_b32 s60, s60, 16
    s_mul_i32 s11, s60, 43
    s_sub_u32 s61, s2, s11                ; fb
    v_lshrrev_b32 v2, 2, {vLANE}
    v_and_b32 v3, 3, {vLANE}
    v_mul_u32_u24 v2, 2752, v2
    v_lshl_add_u32 v2, v3, 4, v2
    s_mul_i32 s10, s60, {128*2752}
    s_lshl_b32 s11, s61, 6
    s_add_u32 s10, s10, s11
    s_mov_b32 s11, {LMOE}
    s_mov_b32 s12, 8""")
L("L_dmagu")
E(f"""    s_mov_b32 m0, s11
    s_sub_u32 s12, s12, 1
    buffer_load_dwordx4 v2, {ST}, s10 offen lds
    s_add_u32 m0, s11, 0x2000
    s_add_u32 s11, s11, 0x400
    buffer_load_dwordx4 v2, {ST2}, s10 offen lds
    s_add_u32 s10, s10, {16*2752}
    s_waitcnt vmcnt(2)
    s_cmp_lg_u32 s12, 0
    s_cbranch_scc1 L_dmagu
    v_mov_b32 v4, {SEL_OFF:#x}
    s_mov_b32 {sSPIN}, 0""")
L("L_selA")
E(f"""    buffer_load_dwordx2 v[2:3], v4, {SWS}, 0 offen sc1
    s_add_u32 {sSPIN}, {sSPIN}, 1
    s_waitcnt vmcnt(0)
    v_cmp_ne_u32 vcc, {sTAG}, v3
    s_cbranch_vccz L_selAok
    s_sleep 8
    s_cmp_lt_u32 {sSPIN}, {SPIN_MAX}
    s_cbranch_scc1 L_selA""")
L("L_selAok")
E(f"""    v_readfirstlane_b32 s10, v2
    s_and_b32 s10, s10, 0x7ff
    s_sub_u32 s10, 2047, s10
    s_lshl_b32 s10, s10, 10
    s_lshl_b32 s11, s60, 8
    s_add_u32 s10, s10, s11""")
for ks in range(8):
    E(f"    buffer_load_dwordx4 v[{32+4*ks}:{35+4*ks}], v102, {SX}, s10 offen offset:{ks*32}")
E(f"""    v_lshl_add_u32 v4, v100, 6, v101
    v_add_u32 v104, {LMOE}, v4""")
zero_acc(0); zero_acc(16)
for half in range(2):
    for k4 in range(4):
        ks = half * 4 + k4
        for m in range(2):
            b = 64 + 8 * k4 + 4 * m
            E(f"""    ds_read_b64_tr_b16 v[{b}:{b+1}], v104 offset:{m*8192+ks*1024}
    ds_read_b64_tr_b16 v[{b+2}:{b+3}], v104 offset:{m*8192+ks*1024+256}""")
    E("    s_waitcnt vmcnt(0) lgkmcnt(0)")
    for k4 in range(4):
        ks = half * 4 + k4
        for m in range(2):
            b = 64 + 8 * k4 + 4 * m
            a = 16 * m
            E(f"    v_mfma_f32_32x32x16_bf16 v[{a}:{a+15}], v[{32+4*ks}:{35+4*ks}], v[{b}:{b+3}], v[{a}:{a+15}]")
E(f"""    v_cmp_gt_u32 vcc, 32, {vLANE}
    s_lshl_b32 s10, s61, 2
    s_add_u32 s10, s10, s60
    s_lshl_b32 s10, s10, 9
    s_add_u32 s10, s10, {PA_OFF:#x}
    v_mov_b32 v33, {sTAG}
    s_nop 7
    v_cndmask_b32 v32, v16, v0, vcc
    buffer_store_dwordx2 v[32:33], v103, {SWS}, s10 offen sc1
    s_branch L_outproj""")
L("L_moeB")
srd(ST, 30, 1376*1024)
E(f"""    s_sub_u32 s61, s2, 172
    s_lshl_b32 s10, s61, 15
    s_mov_b32 s11, {LMOE}
    s_mov_b32 s12, 32""")
L("L_dmawd")
E(f"""    s_mov_b32 m0, s11
    s_add_u32 s11, s11, 0x400
    buffer_load_dwordx4 {vL16}, {ST}, s10 offen lds
    s_add_u32 s10, s10, 0x400
    s_sub_u32 s12, s12, 1
    s_waitcnt vmcnt(7)
    s_cmp_lg_u32 s12, 0
    s_cbranch_scc1 L_dmawd
    s_lshl_b32 s10, s61, 11
    s_add_u32 s10, s10, {PA_OFF:#x}
    s_mov_b32 {sSPIN}, 0""")
L("L_pa")
for i in range(4):
    E(f"    buffer_load_dwordx2 v[{2*i}:{2*i+1}], v103, {SWS}, s10 offen offset:{i*512} sc1")
E(f"""    s_add_u32 {sSPIN}, {sSPIN}, 1
    s_waitcnt vmcnt(0)
    v_xor_b32 v1, {sTAG}, v1
    v_xor_b32 v3, {sTAG}, v3
    v_xor_b32 v5, {sTAG}, v5
    v_xor_b32 v7, {sTAG}, v7
    v_or3_b32 v1, v1, v3, v5
    v_or_b32 v1, v1, v7
    v_cmp_ne_u32 vcc, 0, v1
    s_cbranch_vccz L_paok
    s_sleep 16
    s_cmp_lt_u32 {sSPIN}, {SPIN_MAX}
    s_cbranch_scc1 L_pa""")
L("L_paok")
E(f"""    v_add_f32 v0, v0, v2
    v_add_f32 v4, v4, v6
    v_add_f32 v0, v0, v4
    v_mov_b32 v1, v0
    s_nop 1
    v_permlane32_swap_b32 v0, v1
    s_nop 1
    v_cvt_pk_bf16_f32 v2, v0, v1
    s_mov_b32 s11, {LOG2E:#x}
    v_lshlrev_b32 v0, 16, v2
    v_and_b32 v1, 0xffff0000, v2
    v_mul_f32 v3, s11, v0
    v_exp_f32 v3, -v3
    s_nop 0
    v_add_f32 v3, 1.0, v3
    v_rcp_f32 v3, v3
    s_nop 0
    v_mul_f32 v3, v0, v3
    v_cvt_pk_bf16_f32 v3, v3, v3
    v_lshlrev_b32 v3, 16, v3
    v_mul_f32 v3, v3, v1
    v_cvt_pk_bf16_f32 v3, v3, v3
    v_and_b32 v2, 31, {vLANE}
    v_lshlrev_b32 v2, 1, v2
    v_add_u32 v2, {MISC+2048}, v2
    ds_write_b16 v2, v3
    v_add_u32 v2, {MISC+2048}, v102
    v_lshl_add_u32 v104, v100, 10, v101
    v_add_u32 v104, {LMOE}, v104
    s_waitcnt lgkmcnt(0)
    ds_read_b128 v[32:35], v2
    ds_read_b128 v[36:39], v2 offset:32
    v_cmp_gt_u32 vcc, 32, {vLANE}
    v_mov_b32 v41, {sTAG}
    s_lshl_b32 s10, s61, 12
    s_add_u32 s10, s10, {YP_OFF:#x}
    s_mov_b32 s12, 8""")
L("L_down")
for ct in range(2):
    for ks in range(2):
        b = 64 + 8 * ct + 4 * ks
        E(f"""    ds_read_b64_tr_b16 v[{b}:{b+1}], v104 offset:{ks*16384+ct*64}
    ds_read_b64_tr_b16 v[{b+2}:{b+3}], v104 offset:{ks*16384+ct*64+4096}""")
E(f"""    v_add_u32 v104, 128, v104
    s_waitcnt lgkmcnt(0)
    v_mfma_f32_32x32x16_bf16 v[0:15], v[32:35], v[64:67], 0
    v_mfma_f32_32x32x16_bf16 v[16:31], v[32:35], v[72:75], 0
    v_mfma_f32_32x32x16_bf16 v[0:15], v[36:39], v[68:71], v[0:15]
    v_mfma_f32_32x32x16_bf16 v[16:31], v[36:39], v[76:79], v[16:31]
    s_nop 12
    v_cndmask_b32 v40, v16, v0, vcc
    buffer_store_dwordx2 v[40:41], v103, {SWS}, s10 offen sc1
    s_add_u32 s10, s10, 0x200
    s_sub_u32 s12, s12, 1
    s_cmp_lg_u32 s12, 0
    s_cbranch_scc1 L_down""")

L("L_outproj")
stamp(4)
E(f"""    s_lshr_b32 s68, {sW}, 1               ; ct
    s_and_b32 s69, {sW}, 1                ; qt
    v_bfe_u32 v98, {vLANE}, 2, 2
    v_lshrrev_b32 v97, 5, {vLANE}         ; hh
    v_lshl_add_u32 v99, v97, 2, v98
    v_lshlrev_b32 v99, 7, v99
    v_lshrrev_b32 v98, 1, v98
    v_xor_b32 v98, s68, v98
    v_lshl_add_u32 v99, v98, 6, v99
    v_bfe_u32 v98, {vLANE}, 4, 1
    v_lshl_add_u32 v99, v98, 5, v99
    v_and_b32 v98, 1, {vLANE}
    v_lshl_add_u32 v99, v98, 4, v99
    v_bfe_u32 v98, {vLANE}, 1, 1
    v_lshl_add_u32 v99, v98, 3, v99
    v_and_b32 v96, 31, {vLANE}
    v_lshlrev_b32 v100, 4, v97
    v_lshl_add_u32 v100, v96, 10, v100
    s_lshl_b32 s63, {sB}, 16
    s_lshl_b32 s10, s69, 15
    s_add_u32 s63, s63, s10
    s_add_u32 s64, s63, {O_OFF:#x}
    s_lshl_b32 s10, {sC}, 7
    s_add_u32 s63, s63, s10
    s_lshl_b32 s10, s68, 6
    s_add_u32 s63, s63, s10
    buffer_load_dwordx4 v[104:107], v100, {SX}, s63 offen
    buffer_load_dwordx4 v[108:111], v100, {SX}, s63 offen offset:32
    s_lshl_b32 s10, {sB}, 12
    s_add_u32 s10, s10, {OFL_OFF:#x}
    v_lshlrev_b32 v101, 8, {vLANE}
    v_add_u32 v101, s10, v101
    s_lshl_b32 s10, {sB}, 5
    s_lshl_b32 s11, s69, 4
    s_add_u32 s10, s10, s11
    v_lshrrev_b32 v112, 1, v96
    v_add_u32 v112, s10, v112
    v_lshlrev_b32 v112, 4, v112
    v_add_u32 v112, {RG_OFF+8:#x}, v112
    v_mov_b32 v113, {SEL_OFF:#x}
    s_mov_b32 {sSPIN}, 0""")
L("L_gsel")
E(f"""    buffer_load_dwordx2 v[114:115], v112, {SWS}, 0 offen sc1
    buffer_load_dwordx2 v[116:117], v113, {SWS}, 0 offen sc1
    s_add_u32 {sSPIN}, {sSPIN}, 1
    s_waitcnt vmcnt(0)
    v_cmp_ne_u32 vcc, {sTAG}, v115
    v_cmp_ne_u32 s[12:13], {sTAG}, v117
    s_or_b64 vcc, vcc, s[12:13]
    s_cbranch_vccz L_gselok
    s_sleep 16
    s_cmp_lt_u32 {sSPIN}, {SPIN_MAX}
    s_cbranch_scc1 L_gsel""")
L("L_gselok")
E(f"""    v_readfirstlane_b32 s60, v116
    v_and_b32 v98, 1, {vLANE}
    v_cmp_eq_u32 vcc, 1, v98
    v_lshlrev_b32 v118, 16, v114
    v_and_b32 v119, 0xffff0000, v114
    v_cndmask_b32 v118, v118, v119, vcc   ; g
    v_sub_f32 v119, 1.0, v118
    v_cvt_pk_bf16_f32 v119, v119, v119
    v_and_b32 v119, 0xffff0000, v119      ; bf16(1-g)""")
for i in range(8):
    E(f"    v_lshlrev_b32 v{80+2*i}, 16, v{104+i}")
    E(f"    v_and_b32 v{81+2*i}, 0xffff0000, v{104+i}")
zero_acc(0)
lwait(SY_WO, 2)
E("    s_mov_b32 s62, 0                      ; batch")
L("L_batch")
E(f"""    s_and_b32 s10, s62, 1
    s_lshr_b32 s11, s62, 1
    s_lshl_b32 s12, s11, 4
    s_add_u32 s61, s10, s12
    s_lshl_b32 s12, s61, 11
    v_add_u32 v102, s12, v99""")
for i in range(8):
    E(f"""    ds_read_b64_tr_b16 v[{48+4*i}:{49+4*i}], v102 offset:{i*4096}
    ds_read_b64_tr_b16 v[{50+4*i}:{51+4*i}], v102 offset:{i*4096+1024}""")
E(f"""    s_lshl_b32 s12, s61, 7
    v_add_u32 v103, s12, v101
    s_lshl_b32 s10, s10, 1
    s_add_u32 s10, s10, s11
    s_lshl_b32 s10, s10, 2
    s_add_u32 {sWA}, s10, {SY_FIN}
    s_mov_b32 {sWN}, 1
    s_call_b64 {sRET}, L_lwait""")
poll_dword("v103", vT0, "0xff", sleep=2)
E(f"""    s_lshl_b32 s10, s61, 10
    s_add_u32 s10, s10, s64""")
for i in range(8):
    E(f"    buffer_load_dwordx4 v[{16+4*i}:{19+4*i}], {vL16}, {SWS}, s10 offen offset:{(i%2)*2048} sc1")
    if i % 2 == 1 and i < 7: E("    s_add_u32 s10, s10, 0x1000")
for i in range(8):
    E(f"    s_waitcnt vmcnt({7-i})")
    E(f"    v_mfma_f32_32x32x16_bf16 v[0:15], v[{48+4*i}:{51+4*i}], v[{16+4*i}:{19+4*i}], v[0:15]")
E(f"""    s_add_u32 s62, s62, 1
    s_cmp_eq_u32 s62, 4
    s_cbranch_scc1 L_final
    s_cmp_lg_u32 s62, 2
    s_cbranch_scc1 L_batch""")
stamp(5)
E(f"""    s_and_b32 s10, s60, 0x7ff
    s_sub_u32 s14, 2047, s10              ; idx
    s_lshr_b32 s10, s14, 5
    s_lshl_b32 s11, {sB}, 1
    s_add_u32 s11, s11, s69
    s_cmp_lg_u32 s10, s11
    s_cbranch_scc1 L_noupd
    s_lshl_b32 s10, {sC}, 9
    s_lshl_b32 s11, s68, 8
    s_add_u32 s13, s10, s11
    s_add_u32 s13, s13, {YP_OFF:#x}
    v_mul_u32_u24 v120, {21*4096}, v97
    v_lshl_add_u32 v120, v96, 3, v120
    s_mov_b32 {sSPIN}, 0""")
L("L_ypoll")
E("    s_mov_b32 s10, s13")
for i in range(22):
    E(f"    buffer_load_dwordx2 v[{16+2*i}:{17+2*i}], v120, {SWS}, s10 offen sc1")
    E(f"    s_add_u32 s10, s10, 0x1000")
E(f"""    s_add_u32 {sSPIN}, {sSPIN}, 1
    v_mov_b32 v121, 0
    s_waitcnt vmcnt(0)""")
for i in range(22):
    E(f"    v_xor_b32 v{17+2*i}, {sTAG}, v{17+2*i}")
    E(f"    v_or_b32 v121, v121, v{17+2*i}")
E(f"""    v_cmp_ne_u32 vcc, 0, v121
    s_cbranch_vccz L_yok
    s_sleep 16
    s_cmp_lt_u32 {sSPIN}, {SPIN_MAX}
    s_cbranch_scc1 L_ypoll""")
L("L_yok")
E(f"""    v_cmp_gt_u32 vcc, 32, {vLANE}
    s_nop 1
    v_cndmask_b32 v16, 0, v16, vcc""")
for i in range(1, 22):
    E(f"    v_add_f32 v16, v16, v{16+2*i}")
E(f"""    v_mov_b32 v17, v16
    s_and_b32 s10, s60, 0xffff0000
    s_ashr_i32 s11, s10, 31
    v_permlane32_swap_b32 v16, v17
    s_not_b32 s11, s11
    s_or_b32 s11, s11, 0x80000000
    s_xor_b32 s10, s10, s11
    s_and_b32 s10, s10, 0xffff0000
    v_mov_b32 v24, {LOG2E:#x}
    v_mul_f32 v24, s10, v24
    v_exp_f32 v24, -v24
    v_add_f32 v20, v16, v17
    v_add_f32 v24, 1.0, v24
    v_rcp_f32 v24, v24
    v_cvt_pk_bf16_f32 v20, v20, v20
    v_cvt_pk_bf16_f32 v24, v24, v24
    v_and_b32 v24, 0xffff0000, v24
    v_and_b32 v20, 0xffff0000, v20
    v_mul_f32 v20, v20, v24
    v_cvt_pk_bf16_f32 v20, v20, v20
    v_and_b32 v20, 0xffff0000, v20
    s_lshl_b32 s10, {sW}, 10
    s_add_u32 s10, s10, {MISC}
    v_lshl_add_u32 v21, v96, 2, s10
    v_lshl_add_u32 v121, v97, 5, s10
    ds_write_b32 v21, v20
    s_waitcnt lgkmcnt(0)
    ds_read_b128 v[16:19], v121
    ds_read_b128 v[20:23], v121 offset:16
    ds_read_b128 v[24:27], v121 offset:64
    ds_read_b128 v[28:31], v121 offset:80
    s_and_b32 s10, s14, 31
    v_cmp_eq_u32 vcc, s10, v96
    s_nop 0
    s_waitcnt lgkmcnt(0)""")
for i in range(16):
    E(f"    v_cndmask_b32 v{16+i}, 0, v{16+i}, vcc")
    E(f"    v_add_f32 v{80+i}, v{80+i}, v{16+i}")
for i in range(8):
    E(f"    v_cvt_pk_bf16_f32 v{16+i}, v{80+2*i}, v{81+2*i}")
for i in range(8):
    E(f"    v_lshlrev_b32 v{80+2*i}, 16, v{16+i}")
    E(f"    v_and_b32 v{81+2*i}, 0xffff0000, v{16+i}")
L("L_noupd")
for i in range(16):
    E(f"    v_mul_f32 v{80+i}, v119, v{80+i}")
stamp(6)
E("    s_branch L_batch")
L("L_final")
srd(ST, 34, 0x200000)
E("    s_nop 4")
for i in range(16):
    E(f"    v_fma_f32 v{i}, v{i}, v118, v{80+i}")
for i in range(8):
    E(f"    v_cvt_pk_bf16_f32 v{16+i}, v{2*i}, v{2*i+1}")
E(f"""    buffer_store_dwordx4 v[16:19], v100, {ST}, s63 offen
    buffer_store_dwordx4 v[20:23], v100, {ST}, s63 offen offset:32
    s_branch L_exit""")

L("L_lwait")
E(f"""    v_mov_b32 {vT2}, {sWA}
    s_mov_b32 {sSPIN}, 0""")
L("L_lwait1")
E(f"""    ds_read_b32 {vT3}, {vT2}
    s_add_u32 {sSPIN}, {sSPIN}, 1
    s_waitcnt lgkmcnt(0)
    v_cmp_le_u32 vcc, {sWN}, {vT3}
    s_cbranch_vccnz L_lwait2
    s_sleep 2
    s_cmp_lt_u32 {sSPIN}, 0x80000
    s_cbranch_scc1 L_lwait1""")
L("L_lwait2")
E(f"    s_setpc_b64 {sRET}")

def reads(kind, buf, coff=0):
    ks_s, h_s = (1024, 256) if kind == "Q" else (2048, 512)
    wo = coff // 2 if kind == "Q" else coff
    for ks in range(4):
        b = 16 + 32 * buf
        E(f"""    ds_read_b128 v[{b+4*ks}:{b+3+4*ks}], v{80+ks} offset:{coff}
    ds_read_b64_tr_b16 v[{b+16+4*ks}:{b+17+4*ks}], v84 offset:{wo+ks*ks_s}
    ds_read_b64_tr_b16 v[{b+18+4*ks}:{b+19+4*ks}], v84 offset:{wo+ks*ks_s+h_s}""")
def mm(kind, buf, ks):
    b = 16 + 32 * buf
    x, w = f"v[{b+4*ks}:{b+3+4*ks}]", f"v[{b+16+4*ks}:{b+19+4*ks}]"
    if kind == "V": E(f"    v_mfma_f32_32x32x16_bf16 v[0:15], {x}, {w}, v[0:15]")
    else: E(f"    v_mfma_f32_32x32x16_bf16 v[0:15], {w}, {x}, v[0:15]")
def adv(kind, n):
    for ks in range(4): E(f"    v_add_u32 v{80+ks}, {n*0x2000:#x}, v{80+ks}")
    E(f"    v_add_u32 v84, {n*(0x1000 if kind == 'Q' else 0x2000):#x}, v84")
def bgemm(label, kind):
    L(label)
    E("    s_mov_b32 s60, 8")
    L(label + "_l")
    E("    s_barrier")
    reads(kind, 0)
    adv(kind, 1)
    E("    s_sub_u32 s60, s60, 1")
    for ks in range(4):
        E(f"    s_waitcnt lgkmcnt({9-3*ks})")
        mm(kind, 0, ks)
    E(f"""    s_cmp_lg_u32 s60, 0
    s_cbranch_scc1 {label}_l""")
def pgemm(label, kind):
    L(label)
    zero_acc()
    reads(kind, 0)
    E("    s_mov_b32 s60, 4")
    L(label + "_l")
    E("    s_waitcnt lgkmcnt(0)")
    reads(kind, 1, 0x2000)
    adv(kind, 2)
    for ks in range(4): mm(kind, 0, ks)
    E("    s_waitcnt lgkmcnt(0)")
    reads(kind, 0)
    E("    s_sub_u32 s60, s60, 1")
    for ks in range(4): mm(kind, 1, ks)
    E(f"""    s_cmp_lg_u32 s60, 0
    s_cbranch_scc1 {label}_l
    s_waitcnt lgkmcnt(0)
    s_nop 8
    s_setpc_b64 {sRET}""")
pgemm("L_pgemmK", "K")
pgemm("L_pgemmV", "V")
L("L_qtile")
E(f"    s_call_b64 {sRET}, L_pgemmQ")
E(f"    s_mov_b32 s11, {QSCALE:#x}")
for i in range(16):
    E(f"    v_mul_f32 v{i}, s11, v{i}")
for i in range(8):
    E(f"    v_cvt_pk_bf16_f32 v{16+i}, v{2*i}, v{2*i+1}")
E(f"""    ds_write_b128 v86, v[16:19]
    ds_write_b128 v86, v[20:23] offset:2048
    s_waitcnt lgkmcnt(0)
    s_setpc_b64 {sRET2}""")
pgemm("L_pgemmQ", "Q")

L("L_FR")
E(f"""    s_lshl_b32 {sC}, {sG}, 1
    s_or_b32 {sC}, {sC}, {sTY}
    v_lshlrev_b32 {vL16}, 4, {vLANE}""")
xaddr_setup()
E(f"""    s_cmp_ge_u32 {sW}, 8
    s_cbranch_scc1 L_R""")
gaddr_setup()
zero_acc()
E("    s_waitcnt lgkmcnt(0)")
srd(SWS, 38, WS_SIZE)
E(f"""    s_cmp_eq_u32 {sTY}, 1
    s_cbranch_scc1 L_bgemmV""")
bgemm("L_bgemmK", "K")
E("    s_branch L_genE")
bgemm("L_bgemmV", "V")
L("L_genE")
E("    s_nop 9")
kv_store()
stamp(1)
E("    s_barrier                             ; barrier A")
get_tag()
publish_flag_last(SY_KV0, "s65")
stamp(2)
E("    s_branch L_att")

L("L_R")
if PREFETCH:
    E(f"""    s_getpc_b64 s[60:61]
L_pcref:
    s_sub_u32 s60, s60, L_pcref-{NAME}
    s_subb_u32 s61, s61, 0
    s_lshr_b32 s11, s2, 3
    s_lshl_b32 s11, s11, 2
    s_add_u32 s11, s11, {sHW}
    s_lshl_b32 s11, s11, 7
    s_min_u32 s11, s11, L_end-{NAME}
    v_mov_b32 v2, s11
    s_mov_b64 exec, 1
    global_load_dword v110, v2, s[60:61]
    s_mov_b64 exec, -1""")
E(f"""    v_mov_b32 v4, 0
    v_lshlrev_b32 v8, 2, {vLANE}
    v_add_u32 v8, {SYNC}, v8
    ds_write_b32 v8, v4""")
qaddr_setup()
E(f"""    v_lshrrev_b32 v2, 3, {vLANE}
    v_add_u32 v4, {sROT}, v2
    v_and_b32 v4, 7, v4
    v_and_b32 v5, 7, {vLANE}
    v_lshlrev_b32 v6, 4, v5
    v_lshl_add_u32 v87, v4, 7, v6
    s_lshl_b32 s11, {sC}, 2
    s_add_u32 s11, s11, {sHW}
    s_and_b32 s12, s11, 7
    v_xor_b32 v5, s12, v5
    v_lshlrev_b32 v5, 4, v5
    v_lshl_add_u32 v5, v2, 13, v5
    s_lshl_b32 s11, s11, 8
    v_add_u32 v88, s11, v5
    s_lshl_b32 s11, {sHW}, 10
    s_add_u32 s11, s11, {LQX}
    v_add_u32 v86, s11, {vL16}
    s_waitcnt lgkmcnt(0)""")
srd(SWS, 38, WS_SIZE)
srd(ST, 36, 256)
E(f"""    s_xor_b32 s11, {sW}, 8
    s_or_b32 s11, s11, s2
    s_cmp_lg_u32 s11, 0
    s_cbranch_scc1 L_noepoch
    s_memrealtime s[12:13]
    v_mov_b32 v3, 0
    s_waitcnt lgkmcnt(0)
    s_or_b32 s12, s12, 1
    v_mov_b32 v2, s12
    s_mov_b64 exec, 1
    buffer_store_dword v2, v3, {ST}, 0 offen sc0 sc1
    s_mov_b64 exec, -1""")
L("L_noepoch")
srd(ST, 24, 1024)
srd(ST2, 32, 1024)
E(f"""    buffer_load_dwordx4 v[92:95], v87, {ST}, 0 offen
    buffer_load_dwordx4 v[96:99], v87, {ST2}, 0 offen""")
for i in range(8): E("    s_barrier")
E(f"""    ds_read_b128 v[100:103], v88
    ds_read_b128 v[104:107], v88 offset:128
    s_waitcnt lgkmcnt(0)
    s_barrier                             ; barrier A
    s_cmp_ge_u32 {sHW}, 2
    s_cbranch_scc1 L_noq1
    s_call_b64 {sRET2}, L_qtile""")
signal(SY_Q1)
L("L_noq1")
stamp(1)
get_tag()
E("    s_waitcnt lgkmcnt(0)")
for j in range(4): E(f"    v_mov_b32 v{32+j}, 0")
for q in range(4):
    for j, (xr, wr) in enumerate(((100, 92), (100, 96), (104, 92), (104, 96))):
        E(f"    v_dot2_f32_bf16 v{32+j}, v{xr+q}, v{wr+q}, v{32+j}")
E("    s_nop 2")
for dpp in ("quad_perm:[1,0,3,2] row_mask:0xf bank_mask:0xf", "quad_perm:[2,3,0,1] row_mask:0xf bank_mask:0xf",
            "row_half_mirror row_mask:0xf bank_mask:0xf", "row_mirror row_mask:0xf bank_mask:0xf",
            "row_bcast:15 row_mask:0xa bank_mask:0xf", "row_bcast:31 row_mask:0xc bank_mask:0xf"):
    for j in range(4):
        E(f"    v_add_f32_dpp v{32+j}, v{32+j}, v{32+j} {dpp}")
E(f"""    v_cvt_pk_bf16_f32 v36, v32, v34
    v_cvt_pk_bf16_f32 v37, v33, v35
    s_mov_b32 s11, {LOG2E:#x}
    v_lshlrev_b32 v38, 16, v37
    v_and_b32 v39, 0xffff0000, v37
    v_mul_f32 v38, s11, v38
    v_mul_f32 v39, s11, v39
    v_exp_f32 v38, -v38
    v_exp_f32 v39, -v39
    v_lshlrev_b32 v40, 16, v36
    v_and_b32 v41, 0xffff0000, v36
    v_add_f32 v38, 1.0, v38
    v_add_f32 v39, 1.0, v39
    v_rcp_f32 v38, v38
    v_rcp_f32 v39, v39
    v_ashrrev_i32 v42, 31, v40
    v_ashrrev_i32 v43, 31, v41
    v_cvt_pk_bf16_f32 v46, v38, v39
    v_or_b32 v42, 0x80000000, v42
    v_or_b32 v43, 0x80000000, v43
    v_xor_b32 v40, v40, v42
    v_xor_b32 v41, v41, v43
    v_and_b32 v40, 0xffff0000, v40
    v_and_b32 v41, 0xffff0000, v41
    s_lshl_b32 s11, {sB}, 5
    s_lshl_b32 s12, {sC}, 2
    s_add_u32 s11, s11, s12
    s_add_u32 s11, s11, {sHW}
    s_lshl_b32 s12, s11, 1
    s_sub_u32 s12, 2047, s12
    s_sub_u32 s13, s12, 1
    v_or_b32 v40, s12, v40
    v_or_b32 v41, s13, v41
    v_max_u32 v44, v40, v41
    v_mov_b32 v45, {sTAG}
    v_mov_b32 v47, {sTAG}
    s_lshl_b32 s11, s11, 4
    s_add_u32 s11, s11, {RG_OFF:#x}
    v_mov_b32 v3, s11
    s_mov_b32 exec_lo, 0
    s_mov_b32 exec_hi, 0x80000000
    buffer_store_dwordx4 v[44:47], v3, {SWS}, 0 offen sc1
    s_mov_b64 exec, -1""")
stamp(2)

RB = 72
def K(s): return f"v[{RB+12*s}:{RB+3+12*s}]"
def V0(s): return f"v[{RB+4+12*s}:{RB+7+12*s}]"
def V1(s): return f"v[{RB+8+12*s}:{RB+11+12*s}]"
L("L_att")
E(f"""    s_lshr_b32 s14, {sW}, 3               ; hs
    s_lshl_b32 s10, {sC}, 1
    s_add_u32 {sHB}, s10, s14
    s_lshl_b32 {sSOFF}, {sHB}, 17
    s_lshl_b32 s12, {sHW}, 15
    s_add_u32 {sSOFF}, {sSOFF}, s12
    s_mov_b32 s70, 0xffff
    s_mov_b32 s71, 0xffff
    v_mov_b32 {vIDX}, 0xdddddddd
    v_lshrrev_b32 v2, 5, {vLANE}
    v_and_b32 v3, 15, {vLANE}
    v_lshlrev_b32 v3, 4, v3
    v_lshl_add_u32 {vVA}, v2, 8, v3
    v_and_b32 v2, 7, {vLANE}
    v_bfe_u32 v3, {vLANE}, 3, 1
    v_lshl_add_u32 v2, v3, 5, v2
    s_lshl_b32 s12, {sG}, 6
    s_lshl_b32 s13, {sHW}, 3
    s_add_u32 s12, s12, s13
    v_add_u32 v2, s12, v2
    v_lshlrev_b32 v2, 7, v2
    v_add_u32 {vFL}, {FL_OFF:#x}, v2
    v_and_b32 v2, 31, {vLANE}
    v_cmp_eq_u32 vcc, 16, v2
    v_mov_b32 v2, 0x3f803f80
    s_lshl_b32 s10, s14, 11
    s_add_u32 s10, s10, {LQX}
    v_cndmask_b32 v156, 0, v2, vcc
    v_add_u32 v155, s10, {vL16}
    v_mov_b32 v157, v156""")
for j in range(6):
    for r in range(4, 12, 2):
        E(f"    v_mov_b64 v[{RB+12*j+r}:{RB+12*j+r+1}], v[156:157]")
lwait(SY_Q1, 2)
E(f"""    ds_read_b128 v[64:67], v155
    ds_read_b128 v[68:71], v155 offset:1024""")
poll_dword(vFL, vT0, "0xffff")
stamp(3)
def tile_loads(slot, odd):
    b = RB + 12 * slot
    o = 2048 if odd else 0
    E(f"""    buffer_load_dwordx4 v[{b}:{b+3}], {vL16}, {SWS}, {sSOFF} offen offset:{o} sc1
    s_mov_b64 exec, {sVM}
    buffer_load_dwordx4 v[{b+4}:{b+7}], {vVA}, {SWS}, {sSOFF} offen offset:{o+1024} sc1
    buffer_load_dwordx4 v[{b+8}:{b+11}], {vVA}, {SWS}, {sSOFF} offen offset:{o+1536} sc1
    s_mov_b64 exec, -1""")
for t in range(5):
    if t and t % 2 == 0:
        E(f"    s_add_u32 {sSOFF}, {sSOFF}, 0x1000")
    tile_loads(t, t & 1)
def round_init():
    for i in range(0, 10, 2):
        E(f"    v_mov_b64 v[{32+i}:{33+i}], 0")
        E(f"    v_mov_b64 v[{48+i}:{49+i}], 0")
    for i in range(24, 32, 2):
        E(f"    v_mov_b64 v[{i}:{i+1}], 0")
for i in range(10, 16, 2):
    E(f"    v_mov_b64 v[{32+i}:{33+i}], 0")
    E(f"    v_mov_b64 v[{48+i}:{49+i}], 0")
round_init()
E(f"""    s_mov_b32 {sRND}, 0
    s_mov_b32 {sIT}, 0
    s_mov_b32 {sSTEP3}, 0x1000
    s_mov_b32 {sSTEP5}, 0x1000
    s_setprio {PRIOS[0]}
    s_waitcnt vmcnt(12) lgkmcnt(0)
    v_mfma_f32_32x32x16_bf16 v[0:15], {K(0)}, v[64:67], 0""")
stamp(4)
E("    s_nop 11")
E(".p2align 6")
L("L_loop")
def ex(base, a, b):
    for i in range(a, b): E(f"    v_exp_f32 v{base+i}, v{base+i}")
for j in range(6):
    jp, jn = (j + 5) % 6, (j + 1) % 6
    if j == 4: L("L_pos4")
    ex(0, 0, 3)
    E(f"    v_smfmac_f32_32x32x32_bf16 v[48:63], {V1(jp)}, v[24:31], {vIDX}")
    ex(0, 3, 8)
    E(f"    v_mfma_f32_32x32x16_bf16 v[16:31], {K(j)}, v[68:71], 0")
    if j & 1:
        E(f"    s_add_u32 {sSOFF}, {sSOFF}, { {1: '0x1000', 3: sSTEP3, 5: sSTEP5}[j] }")
    tile_loads(jp, not (j & 1))
    ex(0, 8, 13)
    E(f"    v_smfmac_f32_32x32x32_bf16 v[32:47], {V0(j)}, v[0:7], {vIDX}")
    ex(0, 13, 16)
    ex(16, 0, 3)
    E(f"    v_smfmac_f32_32x32x32_bf16 v[32:47], {V1(j)}, v[8:15], {vIDX}")
    ex(16, 3, 8)
    E("    s_waitcnt vmcnt(12)")
    E(f"    v_mfma_f32_32x32x16_bf16 v[0:15], {K(jn)}, v[64:67], 0")
    ex(16, 8, 13)
    E(f"    v_smfmac_f32_32x32x32_bf16 v[48:63], {V0(j)}, v[16:23], {vIDX}")
    ex(16, 13, 16)
    if j == 1:
        E(f"    s_cmp_eq_u32 {sIT}, 5\n    s_cbranch_scc1 L_end1")
    if j == 3:
        E(f"    s_cmp_eq_u32 {sIT}, 2\n    s_cbranch_scc1 L_end0")
E(f"""    s_add_u32 {sIT}, {sIT}, 1
    s_mov_b32 {sSTEP5}, 0x1000
    s_cmp_eq_u32 {sIT}, 4
    s_cselect_b32 {sSTEP3}, {OOB:#x}, {sSTEP5}""")
for it in range(2, 6):
    if PRIOS[it] != PRIOS[it-1]:
        l = newlab("pr")
        E(f"    s_cmp_lg_u32 {sIT}, {it}\n    s_cbranch_scc1 {l}\n    s_setprio {PRIOS[it]}\n    s_branch L_loop")
        L(l)
E(f"""    s_cmp_lg_u32 {sIT}, 1
    s_cbranch_scc1 L_loop
    s_setprio {PRIOS[1]}""")
lwait(SY_KVOK, 1)
E(f"""    s_mov_b32 {sSTEP5}, {16*0x20000 - 0x7000:#x}
    s_branch L_loop""")
L("L_end0")
E(f"""    v_smfmac_f32_32x32x32_bf16 v[48:63], {V1(3)}, v[24:31], {vIDX}
    s_branch L_rend""")
L("L_end1")
E(f"    v_smfmac_f32_32x32x32_bf16 v[48:63], {V1(1)}, v[24:31], {vIDX}")
L("L_rend")
E(f"""    s_lshl_b32 s69, s14, 3
    s_add_u32 s10, s69, {SY_FIN}
    s_cmp_eq_u32 {sRND}, 0
    s_cselect_b32 {sWA}, {SY_Q2}, s10
    s_cselect_b32 {sWN}, 2, 1
    s_call_b64 {sRET}, L_lwait
    s_lshl_b32 s10, {sRND}, 2
    s_add_u32 s69, s69, s10
    s_cmp_eq_u32 s14, 0
    s_mov_b32 s79, {LG}
    s_cselect_b32 s79, {LACC}, s79
    s_mul_i32 s11, {sHW}, {ACC_SZ}
    s_add_u32 s11, s11, s79
    v_add_u32 {vT0}, s11, {vL16}
    v_lshl_add_u32 {vT1}, {vLANE}, 2, s11
    s_add_u32 s10, s69, {SY_RED}
    v_mov_b32 {vT2}, s10
    v_mov_b32 {vT3}, 1
    ds_write_b128 {vT0}, v[32:35]
    ds_write_b128 {vT0}, v[36:39] offset:1024
    ds_write_b32 {vT1}, v40 offset:2048
    ds_write_b128 {vT0}, v[48:51] offset:2304
    ds_write_b128 {vT0}, v[52:55] offset:3328
    ds_write_b32 {vT1}, v56 offset:4352
    s_waitcnt lgkmcnt(0)
    s_mov_b64 exec, 1
    ds_add_rtn_u32 {vT3}, {vT2}, {vT3}
    s_mov_b64 exec, -1
    v_add_u32 {vT0}, s79, {vL16}
    v_and_b32 {vT1}, 31, {vLANE}
    v_lshl_add_u32 {vT1}, {vT1}, 2, s79
    s_lshl_b32 s61, {sB}, 16
    s_lshl_b32 s10, {sHB}, 10
    s_add_u32 s61, s61, s10
    s_add_u32 s61, s61, {O_OFF:#x}
    s_mov_b32 s62, 0
    s_waitcnt lgkmcnt(0)
    v_readfirstlane_b32 s10, {vT3}
    s_cmp_lg_u32 s10, 3
    s_cbranch_scc1 L_nofin""")
L("L_fin")
for q in range(4):
    E(f"""    ds_read_b128 v[{12*q}:{12*q+3}], {vT0} offset:{q*ACC_SZ}
    ds_read_b128 v[{12*q+4}:{12*q+7}], {vT0} offset:{q*ACC_SZ+1024}
    ds_read_b32 v{12*q+8}, {vT1} offset:{q*ACC_SZ+2048}""")
E(f"""    s_mov_b32 s10, {f2u(2.0**-40):#x}
    s_mov_b32 s11, {f2u(2.0**60):#x}
    s_waitcnt lgkmcnt(6)""")
for i in range(0, 8, 2): E(f"    v_pk_add_f32 v[{i}:{i+1}], v[{i}:{i+1}], v[{12+i}:{13+i}]")
E("    v_add_f32 v8, v8, v20\n    s_waitcnt lgkmcnt(0)")
for i in range(0, 8, 2): E(f"    v_pk_add_f32 v[{24+i}:{25+i}], v[{24+i}:{25+i}], v[{36+i}:{37+i}]")
E("    v_add_f32 v32, v32, v44")
for i in range(0, 8, 2): E(f"    v_pk_add_f32 v[{48+i}:{49+i}], v[{i}:{i+1}], v[{24+i}:{25+i}]")
E(f"""    v_add_f32 v56, v8, v32
    v_pk_add_f32 v[0:1], v[48:49], v[50:51]
    v_pk_add_f32 v[2:3], v[52:53], v[54:55]
    v_mov_b32 v4, 0x207
    v_pk_add_f32 v[0:1], v[0:1], v[2:3]
    v_cmp_nle_f32 s[12:13], s10, v56
    v_add_f32 v0, v0, v1
    v_cmp_nge_f32 s[64:65], s11, v56
    v_cmp_class_f32 vcc, v0, v4
    s_or_b64 s[12:13], s[12:13], s[64:65]
    s_or_b64 vcc, vcc, s[12:13]""")
if FORCE_FB:
    E("    s_mov_b64 vcc, -1")
E("    s_cbranch_vccnz L_fallback")
L("L_norm")
E("    v_rcp_f32 v57, v56\n    s_nop 0")
for i in range(8): E(f"    v_mul_f32 v{48+i}, v{48+i}, v57")
for i in range(4): E(f"    v_cvt_pk_bf16_f32 v{4+i}, v{48+2*i}, v{49+2*i}")
E(f"""    buffer_store_dwordx4 v[4:7], {vL16}, {SWS}, s61 offen sc1
    v_add_u32 {vT0}, 2304, {vT0}
    v_add_u32 {vT1}, 2304, {vT1}
    s_add_u32 s61, s61, 0x8000
    s_add_u32 s62, s62, 1
    s_cmp_lt_u32 s62, 2
    s_cbranch_scc1 L_fin
    s_lshl_b32 s10, {sB}, 5
    s_add_u32 s10, s10, {sHB}
    s_lshl_b32 s10, s10, 7
    s_add_u32 s10, s10, {OFL_OFF:#x}
    s_add_u32 s11, s69, {SY_FIN}
    v_mov_b32 v0, {sTAG}
    v_mov_b32 v1, s10
    v_mov_b32 v2, s11
    v_mov_b32 v3, 1
    s_waitcnt vmcnt(0)
    s_mov_b64 exec, 1
    buffer_store_dword v0, v1, {SWS}, 0 offen sc1
    ds_add_u32 v2, v3
    s_mov_b64 exec, -1""")
L("L_nofin")
E(f"""    s_cmp_lg_u32 {sRND}, 0
    s_cbranch_scc1 L_attdone
    s_mov_b32 {sRND}, 1
    s_add_u32 {sHB}, {sHB}, 16""")
E(f"""    ds_read_b128 v[64:67], v155 offset:4096
    ds_read_b128 v[68:71], v155 offset:5120""")
round_init()
for i in range(10, 16, 2):
    E(f"    v_mov_b64 v[{32+i}:{33+i}], 0")
    E(f"    v_mov_b64 v[{48+i}:{49+i}], 0")
stamp(5)
E(f"""    s_waitcnt lgkmcnt(0)
    v_mfma_f32_32x32x16_bf16 v[0:15], {K(4)}, v[64:67], 0
    s_nop 10
    s_branch L_pos4""")

L("L_fallback")
E(f"""    s_cmp_eq_u32 s62, 0
    s_cselect_b64 vcc, -1, 0
    v_cndmask_b32 v44, v68, v64, vcc
    v_cndmask_b32 v45, v69, v65, vcc
    v_cndmask_b32 v46, v70, v66, vcc
    v_cndmask_b32 v47, v71, v67, vcc
    v_mov_b32 v48, 0xff800000
    s_lshl_b32 s10, {sHB}, 17
    s_mov_b32 s11, 64""")
L("L_fb1")
E(f"""    buffer_load_dwordx4 v[32:35], {vL16}, {SWS}, s10 offen sc1
    s_add_u32 s10, s10, 0x800
    s_waitcnt vmcnt(0)
    v_mfma_f32_32x32x16_bf16 v[0:15], v[32:35], v[44:47], 0
    s_nop 12""")
for i in range(0, 16, 2): E(f"    v_max3_f32 v48, v{i}, v{i+1}, v48")
E(f"""    s_sub_u32 s11, s11, 1
    s_cmp_lg_u32 s11, 0
    s_cbranch_scc1 L_fb1
    v_mov_b32 v49, v48
    s_nop 1
    v_permlane32_swap_b32 v48, v49
    s_nop 1
    v_max_f32 v48, v48, v49""")
for i in range(16): E(f"    v_xor_b32 v{16+i}, 0x80000000, v48")
for i in range(0, 16, 2): E(f"    v_mov_b64 v[{48+i}:{49+i}], 0")
for i in range(36, 44): E(f"    v_mov_b32 v{i}, 0x3f803f80")
E(f"""    s_lshl_b32 s10, {sHB}, 17
    s_mov_b32 s11, 64""")
L("L_fb2")
E(f"""    buffer_load_dwordx4 v[32:35], {vL16}, {SWS}, s10 offen sc1
    s_mov_b64 exec, {sVM}
    buffer_load_dwordx4 v[36:39], {vVA}, {SWS}, s10 offen offset:1024 sc1
    buffer_load_dwordx4 v[40:43], {vVA}, {SWS}, s10 offen offset:1536 sc1
    s_mov_b64 exec, -1
    s_add_u32 s10, s10, 0x800
    s_waitcnt vmcnt(0)
    v_mfma_f32_32x32x16_bf16 v[0:15], v[32:35], v[44:47], v[16:31]
    s_nop 12""")
ex(0, 0, 16)
E(f"""    s_nop 1
    v_smfmac_f32_32x32x32_bf16 v[48:63], v[36:39], v[0:7], {vIDX}
    v_smfmac_f32_32x32x32_bf16 v[48:63], v[40:43], v[8:15], {vIDX}
    s_sub_u32 s11, s11, 1
    s_cmp_lg_u32 s11, 0
    s_cbranch_scc1 L_fb2
    s_nop 12
    s_branch L_norm""")

L("L_attdone")
stamp(6)
L("L_exit")
if "--fixdur" in sys.argv:
    E(f"""L_fd:
    s_memrealtime s[84:85]
    s_waitcnt lgkmcnt(0)
    s_sub_u32 s84, s84, {"s90" if "--own" in sys.argv else sTAG}
    s_cmp_lt_u32 s84, {opt("dur", "6000")}
    s_cbranch_scc1 L_fd""")
if DIAG:
    stamp(7)
    E(f"""    s_mul_i32 s10, s2, 12
    s_add_u32 s10, s10, {sW}
    s_lshl_b32 s10, s10, 7
    s_add_u32 s10, s10, {STAMP_OFF:#x}
    v_lshlrev_b32 v2, 2, {vLANE}
    s_mov_b32 exec_hi, 0
    buffer_store_dword {vSTAMP}, v2, {SWS}, s10 offen""")
if DIAG and "--dbgout" in sys.argv:
    srd(ST, 36, 256)
    E(f"""    s_mov_b64 exec, -1
    v_readlane_b32 s10, {vSTAMP}, 16
    v_readlane_b32 s11, {vSTAMP}, 23
    s_not_b32 s10, s10
    v_mov_b32 v2, s10
    v_mov_b32 v3, s11
    v_mov_b32 v4, 4
    v_mov_b32 v5, 8
    s_mov_b64 exec, 1
    s_cmp_lg_u32 {sW}, 0
    s_cbranch_scc1 L_dbg1
    buffer_atomic_umax v2, v4, {ST}, 0 offen
    buffer_atomic_umax v3, v5, {ST}, 0 offen
L_dbg1:
    s_cmp_lg_u32 s2, 100
    s_cbranch_scc1 L_end
    s_cmp_lg_u32 {sW}, 4
    s_cbranch_scc1 L_end
    s_mov_b64 exec, -1
    v_lshlrev_b32 v2, 2, {vLANE}
    v_subrev_u32 v2, 48, v2
    s_mov_b64 exec, 0xff0000
    buffer_store_dword {vSTAMP}, v2, {ST}, 0 offen""")
L("L_end")
E(f"""    s_endpgm
.section .rodata,"a"
.p2align 6
.amdhsa_kernel {NAME}
  .amdhsa_next_free_vgpr 168
  .amdhsa_next_free_sgpr 96
  .amdhsa_accum_offset 168
  .amdhsa_group_segment_fixed_size 0
  .amdhsa_kernarg_size 96
  .amdhsa_user_sgpr_count 2
  .amdhsa_user_sgpr_kernarg_segment_ptr 1
  .amdhsa_system_sgpr_workgroup_id_x 1
.end_amdhsa_kernel""")

txt = "\n".join(out) + "\n"
dst = [a for a in sys.argv[1:] if not a.startswith("--")]
open(dst[0] if dst else "gated_mix__mha_block__moe_arch_mod__prompt.s", "w").write(txt)
```

```python
import sys, struct

NAME = "gated_mix__mha_block__moe_arch_mod__prompt_kernel"
DIAG = "--diag" in sys.argv
FORCE_FB = "--forcefb" in sys.argv
FORCE_REMOTE = "--forceremote" in sys.argv
def opt(name, default):
    for a in sys.argv:
        if a.startswith(f"--{name}="): return a.split("=", 1)[1]
    return default
PRIOS = [int(c) for c in opt("prios", "3210")]
PREFETCH = int(opt("pf", "1"))
LSLEEP = int(opt("lsleep", "4"))

KV_OFF, O_OFF = 0, 0x400000
GFL_OFF = 0x600000
OFL_OFF = 0x640000
LFL_OFF = 0x680000
RG_OFF, SEL_OFF, YP_OFF, PA_OFF, XID_OFF = 0x830000, 0x834000, 0x838000, 0x868000, 0x890000
STAMP_OFF = 0x900000
WS_SIZE = 0xA00000
LX, LG, LQ = 0, 65536, 131072
SYNC = 163840 - 1024
PART_F, PART_R = 8192, LG + 8192
PSLOT = 9216
LMOE = 8192
MISC = 49152
LWO = 114688
names = ["RED0", "RED1", "LA0", "LA1", "LB0", "LB1", "KVA", "KVB", "Q1", "WQA", "WQB", "WO", "KVOK", "TAG", "LOC", "KVP", "MOED", "FILL"]
WQREL = 2048
SY = {n: 4 * i for i, n in enumerate(names)}

def f2u(x): return struct.unpack("<I", struct.pack("<f", x))[0]
QSCALE = f2u(0.25 * 1.4426950408889634)
LOG2E = f2u(1.4426950408889634)

out = []
def E(s=""):
    for ln in s.split("\n"):
        out.append(ln)
def L(name): out.append(name + ":")

sW, sG, sTY, sB, sP, sROT, sTAG, sHW = "s3", "s4", "s5", "s6", "s7", "s8", "s9", "s15"
SX, SWQ, SWS, ST, ST2 = "s[40:43]", "s[44:47]", "s[48:51]", "s[52:55]", "s[56:59]"
sVM = "s[70:71]"
sSOFF, sNR, sLOC, sIT, sSPIN, sHB, sMODE = "s72", "s73", "s74", "s75", "s76", "s77", "s78"
vSTAMP, vSY, vONE, vT3 = "v167", "v166", "v165", "v164"
vL16, vVA, vIDX, vT0 = "v163", "v162", "v161", "v160"
vLANE = "v159"

ROLE = [""]
def stamp(i):
    if opt("probe", "") == f"{ROLE[0]}{i}":
        E("    s_memrealtime s[90:91]\n    s_waitcnt lgkmcnt(0)")
    if not DIAG: return
    E(f"""    s_memtime s[84:85]
    s_memrealtime s[86:87]
    s_waitcnt lgkmcnt(0)
    v_writelane_b32 {vSTAMP}, s84, {i}
    v_writelane_b32 {vSTAMP}, s86, {16+i}""")

def srd(reg, plo, size):
    n = int(reg[2:reg.index(":")])
    E(f"""    s_mov_b64 s[{n}:{n+1}], s[{plo}:{plo+1}]
    s_mov_b32 s{n+2}, {size:#x}
    s_mov_b32 s{n+3}, 0x20000""")

SPIN_MAX = 40000
lab = [0]
def newlab(p="L"):
    lab[0] += 1
    return f"{p}_{lab[0]}"

def poll_dword(vaddr, vdst, execmask=None, sleep=2, soff="0"):
    l0, l1 = newlab("poll"), newlab("polldone")
    if execmask == "lo32": E("    s_mov_b32 exec_hi, 0")
    elif execmask: E(f"    s_mov_b64 exec, {execmask}")
    E(f"    s_mov_b32 {sSPIN}, 0")
    L(l0)
    E(f"""    buffer_load_dword {vdst}, {vaddr}, {SWS}, {soff} offen sc1
    s_add_u32 {sSPIN}, {sSPIN}, 1
    s_waitcnt vmcnt(0)
    v_cmp_ne_u32 vcc, {sTAG}, {vdst}
    s_cbranch_vccz {l1}
    s_sleep {sleep}
    s_cmp_lt_u32 {sSPIN}, {SPIN_MAX}
    s_cbranch_scc1 {l0}""")
    L(l1)
    if execmask: E("    s_mov_b64 exec, -1")
def signal(name):
    E(f"""    s_mov_b64 exec, 1
    ds_add_u32 {vSY}, {vONE} offset:{SY[name]}
    s_mov_b64 exec, -1""")
def lwait(name, n, sleep=None, vaddr=None):
    l0, l1 = newlab("lw"), newlab("lwd")
    E(f"    s_mov_b32 {sSPIN}, 0")
    L(l0)
    E(f"""    ds_read_b32 {vT3}, {vaddr or vSY} offset:{SY[name]}
    s_add_u32 {sSPIN}, {sSPIN}, 1
    s_waitcnt lgkmcnt(0)
    v_cmp_le_u32 vcc, {n}, {vT3}
    s_cbranch_vccnz {l1}
    s_sleep {LSLEEP if sleep is None else sleep}
    s_cmp_lt_u32 {sSPIN}, 0x20000
    s_cbranch_scc1 {l0}""")
    L(l1)
def zero_acc(base=0):
    for i in range(0, 16, 2):
        E(f"    v_mov_b64 v[{base+i}:{base+i+1}], 0")
DPPS = ("quad_perm:[1,0,3,2] row_mask:0xf bank_mask:0xf", "quad_perm:[2,3,0,1] row_mask:0xf bank_mask:0xf",
        "row_half_mirror row_mask:0xf bank_mask:0xf", "row_mirror row_mask:0xf bank_mask:0xf",
        "row_bcast:15 row_mask:0xa bank_mask:0xf", "row_bcast:31 row_mask:0xc bank_mask:0xf")
def ex(base, a, b):
    for i in range(a, b): E(f"    v_exp_f32 v{base+i}, v{base+i}")

E(f"""; fused gated-mix(MHA, top-1 MoD FFN): QKV GEMM -> attention -> out-proj + mix in one launch
; @launch grid=(256,1,1) block=(768,1,1) lds=163840
.amdgcn_target "amdgcn-amd-amdhsa--gfx950"
.text
.globl {NAME}
.p2align 8
.type {NAME},@function
{NAME}:
    {"s_memrealtime s[90:91]" if "--own" in sys.argv else ""}
    s_load_dwordx16 s[16:31], s[0:1], 0
    s_load_dwordx8 s[32:39], s[0:1], 64
    s_cmp_ge_u32 s2, 256
    s_cbranch_scc1 L_end
    v_lshrrev_b32 v1, 6, v0
    v_and_b32 {vLANE}, 63, v0
    s_bfe_u32 {sP}, s2, 0x40003          ; p = (wg>>3)&15
    s_lshr_b32 s13, s2, 7
    v_readfirstlane_b32 {sW}, v1
    s_and_b32 s12, s2, 7
    s_lshl_b32 s12, s12, 1
    s_or_b32 {sB}, s12, s13
    s_lshr_b32 {sG}, {sP}, 1
    s_and_b32 {sTY}, {sP}, 1
    s_lshl_b32 s13, s13, 2
    s_add_u32 {sROT}, s13, {sP}
    s_and_b32 {sROT}, {sROT}, 7
    s_and_b32 {sHW}, {sW}, 3""")
if DIAG:
    E(f"    v_mov_b32 {vSTAMP}, 0")
    stamp(0)
E(f"""    s_cmp_ge_u32 {sW}, 4
    s_cbranch_scc1 L_FR""")

ROLE[0] = "H"
E(f"""    s_setprio 3
    v_lshrrev_b32 v2, 3, {vLANE}
    v_and_b32 v3, 7, {vLANE}
    v_lshrrev_b32 v4, 4, {vLANE}
    v_xor_b32 v5, v3, v4
    v_lshlrev_b32 v5, 4, v5
    v_lshl_add_u32 v10, v2, 10, v5        ; x even
    v_xor_b32 v11, 64, v10
    v_add_u32 v11, 0x2000, v11            ; x odd
    v_and_b32 v4, 1, v4
    v_lshlrev_b32 v4, 2, v4
    v_xor_b32 v5, v3, v4
    v_lshlrev_b32 v5, 4, v5
    v_mov_b32 v6, 0xc00
    v_mad_u32_u24 v12, v2, v6, v5         ; g even
    v_add_u32 v13, 0x6000, v12            ; g odd
    s_lshl_b32 s60, {sB}, 17
    s_lshl_b32 s61, {sW}, 14
    s_add_u32 s60, s60, s61
    s_lshl_b32 s61, {sTY}, 10
    s_lshl_b32 s62, {sG}, 7
    s_add_u32 s61, s61, s62
    s_mul_i32 s63, {sW}, 0xc000
    s_add_u32 s64, s61, s63
    s_add_u32 s64, s64, 0x400
    s_lshl_b32 s69, {sW}, 11
    s_mov_b32 s14, {sROT}
    s_mov_b32 s10, 0
    s_mov_b32 s42, 0x200000
    s_mov_b32 s43, 0x20000
    s_mov_b32 s46, 0x180000
    s_mov_b32 s47, 0x20000
    s_waitcnt lgkmcnt(0)
    s_mov_b64 s[40:41], s[16:17]
    s_mov_b64 s[44:45], s[18:19]""")
L("L_dma1")
E(f"""    s_lshl_b32 s11, s14, 7
    s_add_u32 s11, s11, s60
    s_mul_i32 s12, s14, 0x30000
    s_add_u32 s12, s12, s64
    s_mov_b32 m0, s69
    s_add_u32 s14, s14, 1
    buffer_load_dwordx4 v10, {SX}, s11 offen lds
    s_add_u32 m0, s69, 0x400
    s_and_b32 s14, s14, 7
    buffer_load_dwordx4 v11, {SX}, s11 offen lds
    s_add_u32 m0, s69, {LG:#x}
    s_add_u32 s10, s10, 1
    buffer_load_dwordx4 v12, {SWQ}, s12 offen lds
    s_add_u32 m0, s69, {LG+0x400:#x}
    s_add_u32 s69, s69, 0x2000
    buffer_load_dwordx4 v13, {SWQ}, s12 offen lds
    s_cmp_lt_u32 s10, 4
    s_cbranch_scc1 L_dma1
    s_waitcnt vmcnt(12)
    s_barrier
    s_cmp_lt_u32 s10, 8
    s_cbranch_scc1 L_dma1
    s_add_u32 s60, s60, 0x10000
    s_mov_b32 s10, 0""")
L("L_dma2")
E(f"""    s_lshl_b32 s11, s14, 7
    s_add_u32 s11, s11, s60
    s_mov_b32 m0, s69
    s_add_u32 s14, s14, 1
    buffer_load_dwordx4 v10, {SX}, s11 offen lds
    s_add_u32 m0, s69, 0x400
    s_and_b32 s14, s14, 7
    buffer_load_dwordx4 v11, {SX}, s11 offen lds
    s_add_u32 s69, s69, 0x2000
    s_add_u32 s10, s10, 1
    s_and_b32 s11, s10, 1
    s_cbranch_scc1 L_dma2
    s_cmp_eq_u32 s10, 8
    s_cbranch_scc1 L_dma2d
    s_waitcnt vmcnt(12)
    s_barrier                             ; #5 #6 #7
    s_cmp_lt_u32 s10, 6
    s_cbranch_scc1 L_dma2
    s_waitcnt vmcnt(8)
    s_barrier                             ; #8
    s_branch L_dma2""")
L("L_dma2d")
E(f"""    v_lshrrev_b32 v7, 2, {vLANE}
    v_and_b32 v3, 3, {vLANE}
    v_lshlrev_b32 v8, 4, v3
    v_mad_u32_u24 v14, v7, v6, v8
    s_lshl_b32 s61, {sP}, 6
    s_add_u32 s79, s61, s63
    s_lshl_b32 s69, {sW}, 10
    s_add_u32 s69, s69, {LQ:#x}
    s_mov_b32 s10, 0""")
L("L_dmaq")
E(f"""    s_mul_i32 s12, s14, 0x30000
    s_add_u32 s12, s12, s79
    s_mov_b32 m0, s69
    s_add_u32 s14, s14, 1
    s_and_b32 s14, s14, 7
    buffer_load_dwordx4 v14, {SWQ}, s12 offen lds
    s_add_u32 s69, s69, 0x1000
    s_add_u32 s10, s10, 1
    s_cmp_eq_u32 s10, 7
    s_cbranch_scc1 L_dmaqd
    s_cmp_lg_u32 s10, 4
    s_cbranch_scc1 L_dmaq
    s_waitcnt vmcnt(12)
    s_barrier                             ; #9
    s_branch L_dmaq""")
L("L_dmaqd")
E(f"""    s_mul_i32 s12, s14, 0x30000
    s_add_u32 s12, s12, s79
    v_mov_b32 {vONE}, 1
    v_mov_b32 {vSY}, {SYNC}
    s_waitcnt vmcnt(11)
    s_barrier                             ; #10
    s_cmp_eq_u32 {sW}, 3
    s_cselect_b32 m0, {WQREL}, s69
    s_nop 0
    buffer_load_dwordx4 v14, {SWQ}, s12 offen lds
    s_waitcnt vmcnt(8)
    s_barrier                             ; #11
    s_waitcnt vmcnt(4)""")
signal("WQA")
E(f"""    ds_read_b32 {vT0}, {vSY} offset:{SY['TAG']}
    ds_read_b32 v9, {vSY} offset:{SY['LOC']}
    s_waitcnt vmcnt(0)""")
signal("WQB")
stamp(1)
srd(SWS, 38, WS_SIZE)
E(f"""    s_waitcnt lgkmcnt(0)
    v_readfirstlane_b32 {sTAG}, {vT0}
    v_readfirstlane_b32 {sLOC}, v9
    s_cmp_ge_u32 {sW}, 2
    s_cbranch_scc1 L_nolp
    s_cmp_lg_u32 {sLOC}, 1
    s_cbranch_scc1 L_nolp
    s_and_b32 s10, {sB}, 14
    s_add_u32 s10, s10, {sW}
    s_lshl_b32 s12, {sG}, 5
    s_add_u32 s10, s10, s12
    s_lshl_b32 s10, s10, 7
    s_add_u32 s13, s10, {LFL_OFF:#x}
    v_lshlrev_b32 v9, 11, {vLANE}
    s_lshl_b32 s10, {sW}, 2
    v_add_u32 v16, s10, {vSY}""")
lwait("KVA", 4, sleep=1)
poll_dword("v9", vT3, "3", sleep=1, soff="s13")
E(f"""    s_mov_b64 exec, 1
    ds_add_u32 v16, {vONE} offset:{SY['LA0']}
    s_mov_b64 exec, -1
    s_add_u32 s13, s13, 0x8000""")
stamp(2)
lwait("KVB", 4, sleep=1)
poll_dword("v9", vT3, "3", sleep=1, soff="s13")
E(f"""    s_mov_b64 exec, 1
    ds_add_u32 v16, {vONE} offset:{SY['LB0']}
    s_mov_b64 exec, -1""")
stamp(9)
L("L_nolp")
E(f"""    v_lshlrev_b32 {vL16}, 4, {vLANE}
    v_lshl_add_u32 v15, v7, 10, v8
    v_bfe_u32 v2, {vLANE}, 2, 2           ; r
    v_lshrrev_b32 v147, 5, {vLANE}        ; hh
    v_bfe_u32 v4, {vLANE}, 4, 1
    v_lshlrev_b32 v4, 5, v4               ; colsub*32
    v_lshl_add_u32 v5, v147, 2, v2
    v_lshl_add_u32 v149, v5, 6, v4
    v_and_b32 v5, 1, {vLANE}
    v_lshl_add_u32 v149, v5, 4, v149
    v_bfe_u32 v5, {vLANE}, 1, 1
    v_lshl_add_u32 v149, v5, 3, v149
    v_add_u32 v149, {LWO}, v149
    v_lshl_add_u32 v156, v147, 3, v2      ; 8hh+r
    v_lshl_add_u32 v157, v3, 3, v4        ; colsub*32+cq*8
    v_and_b32 v146, 31, {vLANE}
    v_lshlrev_b32 v150, 4, v147
    v_lshl_add_u32 v150, v146, 10, v150
    v_lshlrev_b32 v153, 3, {vLANE}        ; lane*8
    s_lshl_b32 s68, {sB}, 2
    s_add_u32 s68, s68, {sW}
    s_lshl_b32 s92, s68, 15
    s_add_u32 s93, s92, {O_OFF:#x}
    s_lshl_b32 s10, {sP}, 6
    s_add_u32 s92, s92, s10
    s_lshl_b32 s10, s68, 12
    s_add_u32 s94, s10, {OFL_OFF:#x}
    v_lshlrev_b32 v151, 8, {vLANE}
    s_lshl_b32 s10, s68, 4
    v_lshrrev_b32 v154, 1, v146
    v_add_u32 v154, s10, v154
    v_lshlrev_b32 v154, 4, v154
    v_add_u32 v154, {RG_OFF+8:#x}, v154
    v_mov_b32 v155, {SEL_OFF:#x}
    s_mul_i32 s10, {sW}, 2304
    v_add_u32 v152, s10, {vL16}
    v_lshl_add_u32 v148, v146, 2, s10
    s_mov_b32 s70, 0xffff
    s_mov_b32 s71, 0xffff
    v_mov_b32 {vIDX}, 0xdddddddd
    v_and_b32 v3, 15, {vLANE}
    v_lshlrev_b32 v3, 4, v3
    v_lshl_add_u32 {vVA}, v147, 8, v3
    s_cmp_lg_u32 {sW}, 3
    s_cbranch_scc1 L_h012
    s_and_b32 s11, s2, 7
    s_lshl_b32 s11, s11, 15
    s_lshl_b32 s12, {sG}, 12
    s_add_u32 s11, s11, s12
    s_add_u32 s11, s11, {GFL_OFF:#x}
    v_lshl_add_u32 v2, {vLANE}, 7, s11""")
lwait("KVP", 1, sleep=2)
poll_dword("v2", "v3", "lo32", sleep=1)
E(f"""    v_lshl_add_u32 v2, {vLANE}, 2, {vSY}
    s_mov_b64 exec, 15
    ds_add_u32 v2, {vONE} offset:{SY['LA0']}
    s_mov_b64 exec, -1""")
signal("KVOK")
stamp(2)
lwait("FILL", 8, sleep=8)
E("    s_branch L_outproj")
L("L_h012")
lwait("FILL", 8, sleep=8)
E(f"""    s_cmp_eq_u32 {sW}, 2
    s_cbranch_scc1 L_moe""")
srd(ST, 20, 0x80000)
E(f"""    s_lshl_b32 s10, {sW}, 18
    s_lshl_b32 s11, {sP}, 6
    s_add_u32 s10, s10, s11
    s_lshl_b32 s11, {sW}, 14
    s_add_u32 s11, s11, {LWO}
    s_mov_b32 s12, 16""")
L("L_dmawo")
E(f"""    s_mov_b32 m0, s11
    s_add_u32 s11, s11, 0x400
    buffer_load_dwordx4 v15, {ST}, s10 offen lds
    s_add_u32 s10, s10, 0x4000
    s_sub_u32 s12, s12, 1
    s_waitcnt vmcnt(3)
    s_cmp_lg_u32 s12, 0
    s_cbranch_scc1 L_dmawo
    s_waitcnt vmcnt(0)""")
signal("WO")
E("    s_branch L_outproj")

L("L_moe")
E(f"""    s_cmp_lt_u32 s2, 172
    s_cbranch_scc1 L_moeA
    s_cmp_lt_u32 s2, 215
    s_cbranch_scc1 L_moeB
    s_cmp_lg_u32 s2, 255
    s_cbranch_scc1 L_moed
    s_mov_b32 {sSPIN}, 0""")
L("L_keys")
E(f"    s_mov_b32 s10, {RG_OFF:#x}")
for i in range(16):
    E(f"    buffer_load_dwordx2 v[{16+2*i}:{17+2*i}], {vL16}, {SWS}, s10 offen offset:{(i%4)*1024} sc1")
    if i % 4 == 3: E("    s_add_u32 s10, s10, 0x1000")
E(f"""    s_add_u32 {sSPIN}, {sSPIN}, 1
    v_mov_b32 v2, 0
    v_mov_b32 v3, 0
    s_waitcnt vmcnt(0)""")
for i in range(16):
    E(f"""    v_xor_b32 v{17+2*i}, {sTAG}, v{17+2*i}
    v_max_u32 v2, v2, v{16+2*i}
    v_or_b32 v3, v3, v{17+2*i}""")
E(f"""    v_cmp_ne_u32 vcc, 0, v3
    s_cbranch_vccz L_keysok
    s_sleep 8
    s_cmp_lt_u32 {sSPIN}, {SPIN_MAX}
    s_cbranch_scc1 L_keys""")
L("L_keysok")
for dpp in DPPS:
    E(f"    s_nop 1\n    v_max_u32_dpp v2, v2, v2 {dpp}")
E(f"""    v_mov_b32 v3, {sTAG}
    s_mov_b32 exec_lo, 0
    s_mov_b32 exec_hi, 0x80000000
    buffer_store_dwordx2 v[2:3], v155, {SWS}, 0 offen sc1
    s_mov_b64 exec, -1
    s_branch L_moed""")
L("L_moeA")
srd(ST, 26, 512*2752)
srd(ST2, 28, 512*2752)
E(f"""    s_mul_i32 s60, s2, 1525
    s_lshr_b32 s60, s60, 16
    s_mul_i32 s11, s60, 43
    s_sub_u32 s61, s2, s11                ; fb
    v_mul_u32_u24 v2, 2752, v7
    v_add_u32 v2, v2, v8
    s_mul_i32 s10, s60, {128*2752}
    s_lshl_b32 s11, s61, 6
    s_add_u32 s10, s10, s11
    s_mov_b32 s11, {LMOE}
    s_mov_b32 s12, 8""")
L("L_dmagu")
E(f"""    s_mov_b32 m0, s11
    s_sub_u32 s12, s12, 1
    buffer_load_dwordx4 v2, {ST}, s10 offen lds
    s_add_u32 m0, s11, 0x2000
    s_add_u32 s11, s11, 0x400
    buffer_load_dwordx4 v2, {ST2}, s10 offen lds
    s_add_u32 s10, s10, {16*2752}
    s_waitcnt vmcnt(4)
    s_cmp_lg_u32 s12, 0
    s_cbranch_scc1 L_dmagu
    s_mov_b32 {sSPIN}, 0""")
L("L_selA")
E(f"""    buffer_load_dwordx2 v[2:3], v155, {SWS}, 0 offen sc1
    s_add_u32 {sSPIN}, {sSPIN}, 1
    s_waitcnt vmcnt(0)
    v_cmp_ne_u32 vcc, {sTAG}, v3
    s_cbranch_vccz L_selAok
    s_sleep 8
    s_cmp_lt_u32 {sSPIN}, {SPIN_MAX}
    s_cbranch_scc1 L_selA""")
L("L_selAok")
E(f"""    v_readfirstlane_b32 s10, v2
    v_lshlrev_b32 v4, 4, v147
    v_lshl_add_u32 v140, v156, 6, v157
    s_and_b32 s10, s10, 0x7ff
    s_sub_u32 s10, 2047, s10
    s_lshl_b32 s10, s10, 10
    s_lshl_b32 s11, s60, 8
    s_add_u32 s10, s10, s11""")
for ks in range(8):
    E(f"    buffer_load_dwordx4 v[{32+4*ks}:{35+4*ks}], v4, {SX}, s10 offen offset:{ks*32}")
for ks in range(8):
    for m in range(2):
        b = 64 + 8 * ks + 4 * m
        E(f"""    ds_read_b64_tr_b16 v[{b}:{b+1}], v140 offset:{LMOE+m*8192+ks*1024}
    ds_read_b64_tr_b16 v[{b+2}:{b+3}], v140 offset:{LMOE+m*8192+ks*1024+256}""")
E("    s_waitcnt vmcnt(0) lgkmcnt(0)")
for ks in range(8):
    for m in range(2):
        b = 64 + 8 * ks + 4 * m
        a = 16 * m
        c = "0" if ks == 0 else f"v[{a}:{a+15}]"
        E(f"    v_mfma_f32_32x32x16_bf16 v[{a}:{a+15}], v[{32+4*ks}:{35+4*ks}], v[{b}:{b+3}], {c}")
E(f"""    v_cmp_gt_u32 vcc, 32, {vLANE}
    s_lshl_b32 s10, s61, 2
    s_add_u32 s10, s10, s60
    s_lshl_b32 s10, s10, 9
    s_add_u32 s10, s10, {PA_OFF:#x}
    v_mov_b32 v33, {sTAG}
    s_nop 7
    v_cndmask_b32 v32, v16, v0, vcc
    buffer_store_dwordx2 v[32:33], v153, {SWS}, s10 offen sc1
    s_branch L_moed""")
L("L_moeB")
srd(ST, 30, 1376*1024)
E(f"""    s_sub_u32 s61, s2, 172
    s_lshl_b32 s10, s61, 15
    s_mov_b32 s11, {LMOE}
    s_mov_b32 s12, 32""")
L("L_dmawd")
E(f"""    s_mov_b32 m0, s11
    s_add_u32 s11, s11, 0x400
    buffer_load_dwordx4 {vL16}, {ST}, s10 offen lds
    s_add_u32 s10, s10, 0x400
    s_sub_u32 s12, s12, 1
    s_waitcnt vmcnt(7)
    s_cmp_lg_u32 s12, 0
    s_cbranch_scc1 L_dmawd
    s_lshl_b32 s10, s61, 11
    s_add_u32 s10, s10, {PA_OFF:#x}
    s_mov_b32 {sSPIN}, 0""")
L("L_pa")
for i in range(4):
    E(f"    buffer_load_dwordx2 v[{2*i}:{2*i+1}], v153, {SWS}, s10 offen offset:{i*512} sc1")
E(f"""    s_add_u32 {sSPIN}, {sSPIN}, 1
    s_waitcnt vmcnt(0)
    v_xor_b32 v1, {sTAG}, v1
    v_xor_b32 v3, {sTAG}, v3
    v_xor_b32 v5, {sTAG}, v5
    v_xor_b32 v7, {sTAG}, v7
    v_or3_b32 v1, v1, v3, v5
    v_or_b32 v1, v1, v7
    v_cmp_ne_u32 vcc, 0, v1
    s_cbranch_vccz L_paok
    s_sleep 16
    s_cmp_lt_u32 {sSPIN}, {SPIN_MAX}
    s_cbranch_scc1 L_pa""")
L("L_paok")
E(f"""    v_add_f32 v0, v0, v2
    v_add_f32 v4, v4, v6
    v_add_f32 v0, v0, v4
    v_mov_b32 v1, v0
    s_nop 1
    v_permlane32_swap_b32 v0, v1
    s_nop 1
    v_cvt_pk_bf16_f32 v2, v0, v1
    s_mov_b32 s11, {LOG2E:#x}
    v_lshlrev_b32 v0, 16, v2
    v_and_b32 v1, 0xffff0000, v2
    v_mul_f32 v3, s11, v0
    v_exp_f32 v3, -v3
    s_nop 0
    v_add_f32 v3, 1.0, v3
    v_rcp_f32 v3, v3
    s_nop 0
    v_mul_f32 v3, v0, v3
    v_cvt_pk_bf16_f32 v3, v3, v3
    v_lshlrev_b32 v3, 16, v3
    v_mul_f32 v3, v3, v1
    v_cvt_pk_bf16_f32 v3, v3, v3
    v_lshlrev_b32 v2, 1, v146
    ds_write_b16 v2, v3 offset:{MISC+2048}
    v_lshlrev_b32 v2, 4, v147
    v_lshl_add_u32 v42, v156, 10, v157
    s_waitcnt lgkmcnt(0)
    ds_read_b128 v[32:35], v2 offset:{MISC+2048}
    ds_read_b128 v[36:39], v2 offset:{MISC+2048+32}
    v_cmp_gt_u32 vcc, 32, {vLANE}
    v_mov_b32 v41, {sTAG}
    s_lshl_b32 s10, s61, 12
    s_add_u32 s10, s10, {YP_OFF:#x}
    s_mov_b32 s12, 8""")
L("L_down")
for ct in range(2):
    for ks in range(2):
        b = 64 + 8 * ct + 4 * ks
        E(f"""    ds_read_b64_tr_b16 v[{b}:{b+1}], v42 offset:{LMOE+ks*16384+ct*64}
    ds_read_b64_tr_b16 v[{b+2}:{b+3}], v42 offset:{LMOE+ks*16384+ct*64+4096}""")
E(f"""    v_add_u32 v42, 128, v42
    s_waitcnt lgkmcnt(0)
    v_mfma_f32_32x32x16_bf16 v[0:15], v[32:35], v[64:67], 0
    v_mfma_f32_32x32x16_bf16 v[16:31], v[32:35], v[72:75], 0
    v_mfma_f32_32x32x16_bf16 v[0:15], v[36:39], v[68:71], v[0:15]
    v_mfma_f32_32x32x16_bf16 v[16:31], v[36:39], v[76:79], v[16:31]
    s_nop 12
    v_cndmask_b32 v40, v16, v0, vcc
    buffer_store_dwordx2 v[40:41], v153, {SWS}, s10 offen sc1
    s_add_u32 s10, s10, 0x200
    s_sub_u32 s12, s12, 1
    s_cmp_lg_u32 s12, 0
    s_cbranch_scc1 L_down""")
L("L_moed")
signal("MOED")

L("L_outproj")
stamp(3)
E(f"""    buffer_load_dwordx4 v[128:131], v150, {SX}, s92 offen
    buffer_load_dwordx4 v[132:135], v150, {SX}, s92 offen offset:32
    s_lshl_b32 s10, {sP}, 11
    s_add_u32 s63, s10, s93
    v_lshl_add_u32 v3, {vLANE}, 7, s63
    s_lshl_b32 s10, {sP}, 8
    s_add_u32 s64, s10, s94
    s_add_u32 s10, s64, 128
    v_writelane_b32 v3, s64, 16
    v_writelane_b32 v3, s10, 17
    s_mov_b64 exec, 0x3ffff
    buffer_load_dword v5, v3, {SWS}, 0 offen sc1
    s_mov_b64 exec, -1
    s_mov_b32 {sSPIN}, 0""")
L("L_gsel")
E(f"""    buffer_load_dwordx2 v[136:137], v154, {SWS}, 0 offen sc1
    buffer_load_dwordx2 v[138:139], v155, {SWS}, 0 offen sc1
    s_add_u32 {sSPIN}, {sSPIN}, 1
    s_waitcnt vmcnt(0) lgkmcnt(0)
    v_cmp_ne_u32 vcc, {sTAG}, v137
    v_cmp_ne_u32 s[12:13], {sTAG}, v139
    s_or_b64 vcc, vcc, s[12:13]
    s_cbranch_vccz L_gselok
    s_sleep 32
    s_cmp_lt_u32 {sSPIN}, {SPIN_MAX}
    s_cbranch_scc1 L_gsel""")
L("L_gselok")
E(f"""    v_readfirstlane_b32 s60, v138
    v_and_b32 v4, 1, {vLANE}
    v_cmp_eq_u32 vcc, 1, v4
    v_lshlrev_b32 v144, 16, v136
    v_and_b32 v145, 0xffff0000, v136
    v_cndmask_b32 v144, v144, v145, vcc   ; g
    v_sub_f32 v136, 1.0, v144
    v_cvt_pk_bf16_f32 v136, v136, v136
    v_and_b32 v136, 0xffff0000, v136      ; bf16(1-g)""")
for i in range(8):
    E(f"    v_lshlrev_b32 v{112+2*i}, 16, v{128+i}")
    E(f"    v_and_b32 v{113+2*i}, 0xffff0000, v{128+i}")
E(f"""    s_and_b32 s10, s60, 0x7ff
    s_sub_u32 s14, 2047, s10              ; idx
    s_lshr_b32 s10, s14, 5
    s_cmp_lg_u32 s10, s68
    s_cbranch_scc1 L_noupd
    s_lshl_b32 s13, {sP}, 8
    s_add_u32 s13, s13, {YP_OFF:#x}
    v_mul_u32_u24 v140, {21*4096}, v147
    v_lshl_add_u32 v140, v146, 3, v140
    s_mov_b32 {sSPIN}, 0""")
L("L_ypoll")
E("    s_mov_b32 s10, s13")
for i in range(22):
    E(f"    buffer_load_dwordx2 v[{16+2*i}:{17+2*i}], v140, {SWS}, s10 offen sc1")
    E(f"    s_add_u32 s10, s10, 0x1000")
E(f"""    s_add_u32 {sSPIN}, {sSPIN}, 1
    v_mov_b32 v141, 0
    s_waitcnt vmcnt(0)""")
for i in range(22):
    E(f"    v_xor_b32 v{17+2*i}, {sTAG}, v{17+2*i}")
    E(f"    v_or_b32 v141, v141, v{17+2*i}")
E(f"""    v_cmp_ne_u32 vcc, 0, v141
    s_cbranch_vccz L_yok
    s_sleep 32
    s_cmp_lt_u32 {sSPIN}, {SPIN_MAX}
    s_cbranch_scc1 L_ypoll""")
L("L_yok")
E(f"""    v_cmp_gt_u32 vcc, 32, {vLANE}
    s_nop 1
    v_cndmask_b32 v16, 0, v16, vcc""")
for i in range(1, 22):
    E(f"    v_add_f32 v16, v16, v{16+2*i}")
E(f"""    v_mov_b32 v17, v16
    s_and_b32 s10, s60, 0xffff0000
    s_ashr_i32 s11, s10, 31
    v_permlane32_swap_b32 v16, v17
    s_not_b32 s11, s11
    s_or_b32 s11, s11, 0x80000000
    s_xor_b32 s10, s10, s11
    s_and_b32 s10, s10, 0xffff0000
    v_mov_b32 v24, {LOG2E:#x}
    v_mul_f32 v24, s10, v24
    v_exp_f32 v24, -v24
    v_add_f32 v20, v16, v17
    v_add_f32 v24, 1.0, v24
    v_rcp_f32 v24, v24
    v_cvt_pk_bf16_f32 v20, v20, v20
    v_cvt_pk_bf16_f32 v24, v24, v24
    v_and_b32 v24, 0xffff0000, v24
    v_and_b32 v20, 0xffff0000, v20
    v_mul_f32 v20, v20, v24
    v_cvt_pk_bf16_f32 v20, v20, v20
    v_and_b32 v20, 0xffff0000, v20
    v_lshlrev_b32 v21, 2, v146
    v_lshlrev_b32 v141, 5, v147
    ds_write_b32 v21, v20 offset:{MISC}
    s_waitcnt lgkmcnt(0)
    ds_read_b128 v[16:19], v141 offset:{MISC}
    ds_read_b128 v[20:23], v141 offset:{MISC+16}
    ds_read_b128 v[24:27], v141 offset:{MISC+64}
    ds_read_b128 v[28:31], v141 offset:{MISC+80}
    s_and_b32 s10, s14, 31
    v_cmp_eq_u32 vcc, s10, v146
    s_nop 0
    s_waitcnt lgkmcnt(0)""")
for i in range(16):
    E(f"    v_cndmask_b32 v{16+i}, 0, v{16+i}, vcc")
    E(f"    v_add_f32 v{112+i}, v{112+i}, v{16+i}")
for i in range(8):
    E(f"    v_cvt_pk_bf16_f32 v{16+i}, v{112+2*i}, v{113+2*i}")
for i in range(8):
    E(f"    v_lshlrev_b32 v{112+2*i}, 16, v{16+i}")
    E(f"    v_and_b32 v{113+2*i}, 0xffff0000, v{16+i}")
L("L_noupd")
for i in range(0, 16, 2):
    E(f"    v_pk_mul_f32 v[{112+i}:{113+i}], v[{112+i}:{113+i}], v[136:137] op_sel_hi:[1,0]")
zero_acc(0)
srd(ST, 34, 0x200000)
E(f"""    v_mov_b32 {vT0}, {sTAG}
    v_mov_b32 v143, 0x207
    v_mov_b32 v142, 0
    v_add_u32 v152, {PART_F}, v152
    v_add_u32 v148, {PART_F}, v148
    v_mov_b32 v158, {vSY}
    s_lshl_b32 {sHB}, {sP}, 1
    s_mov_b32 s62, 0""")
lwait("WO", 2, sleep=8)
stamp(4)
L("L_batch")
for i in range(8):
    E(f"""    ds_read_b64_tr_b16 v[{80+4*i}:{81+4*i}], v149 offset:{i*2048}
    ds_read_b64_tr_b16 v[{82+4*i}:{83+4*i}], v149 offset:{i*2048+512}""")
E(f"""    s_mov_b32 s12, {f2u(2.0**-40):#x}
    s_mov_b32 s13, {f2u(2.0**60):#x}""")
lwait("RED0", 4, vaddr="v158", sleep=int(opt("redsleep", "2")))
for q in range(4):
    E(f"""    ds_read_b128 v[{16+12*q}:{19+12*q}], v152 offset:{q*PSLOT}
    ds_read_b128 v[{20+12*q}:{23+12*q}], v152 offset:{q*PSLOT+1024}
    ds_read_b32 v{24+12*q}, v148 offset:{q*PSLOT+2048}""")
E("    s_waitcnt lgkmcnt(6)")
for i in range(0, 8, 2): E(f"    v_pk_add_f32 v[{16+i}:{17+i}], v[{16+i}:{17+i}], v[{28+i}:{29+i}]")
E("    v_add_f32 v24, v24, v36\n    s_waitcnt lgkmcnt(0)\n    v_add_f32 v48, v48, v60")
for i in range(0, 8, 2): E(f"    v_pk_add_f32 v[{40+i}:{41+i}], v[{40+i}:{41+i}], v[{52+i}:{53+i}]")
E("    v_add_f32 v24, v24, v48")
for i in range(0, 4, 2): E(f"    v_pk_add_f32 v[{16+i}:{17+i}], v[{16+i}:{17+i}], v[{40+i}:{41+i}]")
E("    v_rcp_f32 v26, v24")
for i in range(4, 8, 2): E(f"    v_pk_add_f32 v[{16+i}:{17+i}], v[{16+i}:{17+i}], v[{40+i}:{41+i}]")
E(f"""    v_cmp_nle_f32 s[10:11], s12, v24
    v_cmp_nge_f32 s[12:13], s13, v24""")
for i in range(0, 8, 2): E(f"    v_pk_mul_f32 v[{16+i}:{17+i}], v[{16+i}:{17+i}], v[26:27] op_sel_hi:[1,0]")
E(f"""    v_pk_add_f32 v[28:29], v[16:17], v[18:19]
    v_pk_add_f32 v[30:31], v[20:21], v[22:23]
    v_cvt_pk_bf16_f32 v16, v16, v17
    v_pk_add_f32 v[28:29], v[28:29], v[30:31]
    v_cvt_pk_bf16_f32 v17, v18, v19
    v_add_f32 v28, v28, v29
    v_cvt_pk_bf16_f32 v18, v20, v21
    v_cmp_class_f32 vcc, v28, v143
    v_cvt_pk_bf16_f32 v19, v22, v23
    s_or_b64 s[10:11], s[10:11], s[12:13]
    s_or_b64 vcc, vcc, s[10:11]""")
if FORCE_FB:
    E("    s_mov_b64 vcc, -1")
E("    s_cbranch_vccnz L_fallback")
L("L_ost")
E(f"""    s_cmp_eq_u32 {sLOC}, 1
    s_cbranch_scc0 L_ostr
    buffer_store_dwordx4 v[16:19], {vL16}, {SWS}, s63 offen
    s_mov_b64 exec, 1
    s_waitcnt vmcnt(0)
    buffer_store_dword {vT0}, v142, {SWS}, s64 offen
    s_branch L_ostd""")
L("L_ostr")
E(f"""    buffer_store_dwordx4 v[16:19], {vL16}, {SWS}, s63 offen sc1
    s_mov_b64 exec, 1
    s_waitcnt vmcnt(0)
    buffer_store_dword {vT0}, v142, {SWS}, s64 offen sc1""")
L("L_ostd")
if DIAG:
    E("    s_mov_b64 exec, -1\n    s_cmp_lg_u32 s62, 0\n    s_cbranch_scc1 L_ns9")
    stamp(5)
    E("    s_branch L_ns9b")
    L("L_ns9")
    stamp(8)
    L("L_ns9b")
poll_dword("v151", vT3, "0xffff", sleep=1, soff="s94")
E("    s_mov_b32 s10, s93")
for i in range(16):
    E(f"    buffer_load_dwordx4 v[{16+4*i}:{19+4*i}], {vL16}, {SWS}, s10 offen offset:{(i%2)*2048} sc1")
    if i % 2 == 1 and i < 15: E("    s_add_u32 s10, s10, 0x1000")
for i in range(16):
    w = 80 + 4 * (i % 8)
    if i < 8: E(f"    s_waitcnt vmcnt({15-i})")
    else: E(f"    s_waitcnt vmcnt({15-i}) lgkmcnt({min(15, 2*(15-i))})")
    E(f"    v_mfma_f32_32x32x16_bf16 v[0:15], v[{w}:{w+3}], v[{16+4*i}:{19+4*i}], v[0:15]")
    if i < 8:
        E(f"""    ds_read_b64_tr_b16 v[{w}:{w+1}], v149 offset:{(i+8)*2048}
    ds_read_b64_tr_b16 v[{w+2}:{w+3}], v149 offset:{(i+8)*2048+512}""")
E(f"""    s_cmp_lg_u32 s62, 0
    s_cbranch_scc1 L_final
    s_mov_b32 s62, 1
    s_add_u32 {sHB}, {sHB}, 1
    s_add_u32 s63, s63, 0x400
    s_add_u32 s64, s64, 128
    s_add_u32 s93, s93, 0x400
    s_add_u32 s94, s94, 128
    v_add_u32 v149, 0x400, v149
    v_add_u32 v152, {LG}, v152
    v_add_u32 v148, {LG}, v148
    v_add_u32 v158, 4, v158""")
stamp(6)
E("    s_branch L_batch")
L("L_final")
E("    s_nop 9")
for i in range(0, 16, 2):
    E(f"    v_pk_fma_f32 v[{i}:{i+1}], v[{i}:{i+1}], v[144:145], v[{112+i}:{113+i}] op_sel_hi:[1,0,1]")
for i in range(8):
    E(f"    v_cvt_pk_bf16_f32 v{16+i}, v{2*i}, v{2*i+1}")
E(f"""    buffer_store_dwordx4 v[16:19], v150, {ST}, s92 offen
    buffer_store_dwordx4 v[20:23], v150, {ST}, s92 offen offset:32
    s_branch L_exit""")

L("L_fallback")
E(f"""    s_and_b32 s10, {sW}, 1
    s_lshl_b32 s10, s10, 12
    s_lshr_b32 s11, {sW}, 1
    s_lshl_b32 s11, s11, 16
    s_add_u32 s10, s10, s11
    s_lshl_b32 s11, s62, 10
    s_add_u32 s10, s10, s11
    v_add_u32 v16, s10, {vL16}
    ds_read_b128 v[76:79], v16
    v_mov_b32 v48, 0xff800000
    s_lshl_b32 s10, {sHB}, 17
    s_mov_b32 s11, 64
    s_waitcnt lgkmcnt(0)""")
L("L_fb1")
E(f"""    buffer_load_dwordx4 v[64:67], {vL16}, {SWS}, s10 offen sc1
    s_add_u32 s10, s10, 0x800
    s_waitcnt vmcnt(0)
    v_mfma_f32_32x32x16_bf16 v[16:31], v[64:67], v[76:79], 0
    s_nop 12""")
for i in range(0, 16, 2): E(f"    v_max3_f32 v48, v{16+i}, v{17+i}, v48")
E(f"""    s_sub_u32 s11, s11, 1
    s_cmp_lg_u32 s11, 0
    s_cbranch_scc1 L_fb1
    v_mov_b32 v49, v48
    s_nop 1
    v_permlane32_swap_b32 v48, v49
    s_nop 1
    v_max_f32 v48, v48, v49""")
for i in range(16): E(f"    v_xor_b32 v{32+i}, 0x80000000, v48")
zero_acc(48)
for i in range(68, 76): E(f"    v_mov_b32 v{i}, 0x3f803f80")
E(f"""    s_lshl_b32 s10, {sHB}, 17
    s_mov_b32 s11, 64""")
L("L_fb2")
E(f"""    buffer_load_dwordx4 v[64:67], {vL16}, {SWS}, s10 offen sc1
    s_mov_b64 exec, {sVM}
    buffer_load_dwordx4 v[68:71], {vVA}, {SWS}, s10 offen offset:1024 sc1
    buffer_load_dwordx4 v[72:75], {vVA}, {SWS}, s10 offen offset:1536 sc1
    s_mov_b64 exec, -1
    s_add_u32 s10, s10, 0x800
    s_waitcnt vmcnt(0)
    v_mfma_f32_32x32x16_bf16 v[16:31], v[64:67], v[76:79], v[32:47]
    s_nop 12""")
ex(16, 0, 16)
E(f"""    s_nop 1
    v_smfmac_f32_32x32x32_bf16 v[48:63], v[68:71], v[16:23], {vIDX}
    v_smfmac_f32_32x32x32_bf16 v[48:63], v[72:75], v[24:31], {vIDX}
    s_sub_u32 s11, s11, 1
    s_cmp_lg_u32 s11, 0
    s_cbranch_scc1 L_fb2
    s_nop 12
    v_rcp_f32 v56, v56
    s_nop 0""")
for i in range(8): E(f"    v_mul_f32 v{48+i}, v{48+i}, v56")
for i in range(4): E(f"    v_cvt_pk_bf16_f32 v{16+i}, v{48+2*i}, v{49+2*i}")
E("    s_branch L_ost")

L("L_FR")
E(f"""    v_and_b32 v2, 31, {vLANE}
    v_lshrrev_b32 v3, 5, {vLANE}
    v_bfe_u32 v4, {vLANE}, 1, 3
    v_xor_b32 v4, v4, v3
    v_lshlrev_b32 v4, 4, v4
    v_lshl_add_u32 v160, v2, 7, v4
    s_and_b32 s69, {sHW}, 1
    s_lshr_b32 s68, {sHW}, 1
    s_lshl_b32 s11, s69, 12
    v_add_u32 v160, s11, v160
    v_mov_b32 {vSY}, {SYNC}
    v_bfe_u32 v2, {vLANE}, 2, 2           ; r
    v_lshl_add_u32 v6, v3, 3, v2          ; 8hh+r
    v_bfe_u32 v5, {vLANE}, 4, 1
    v_and_b32 v7, 3, {vLANE}
    v_lshlrev_b32 v7, 3, v7
    v_lshl_add_u32 v7, v5, 5, v7          ; colsub*32+cq*8
    s_cmp_ge_u32 {sW}, 8
    s_cbranch_scc1 L_R""")
ROLE[0] = "F"
E(f"""    v_xor_b32 v161, 32, v160
    v_xor_b32 v162, 64, v160
    v_xor_b32 v163, 0x60, v160
    v_lshl_add_u32 v4, v6, 7, v7
    v_lshrrev_b32 v2, 1, v2
    v_xor_b32 v2, s68, v2
    v_lshl_add_u32 v4, v2, 6, v4
    v_add_u32 v164, {LG:#x}, v4
    v_and_b32 v2, 0x33, {vLANE}
    v_bfe_u32 v4, {vLANE}, 2, 1
    v_lshl_or_b32 v2, v4, 3, v2
    v_bfe_u32 v4, {vLANE}, 3, 1
    v_lshl_or_b32 v2, v4, 2, v2
    v_lshlrev_b32 v165, 4, v2
    v_and_b32 v2, 15, {vLANE}
    v_lshlrev_b32 v2, 4, v2
    v_lshl_add_u32 v2, v3, 8, v2
    v_lshl_add_u32 v4, v5, 17, v2
    v_add_u32 v4, 0x400, v4
    s_cmp_eq_u32 {sTY}, 1
    s_cselect_b64 vcc, -1, 0
    s_movk_i32 s67, 0x200
    s_cselect_b32 s67, s67, 0x20000
    v_cndmask_b32 v165, v165, v4, vcc
    s_lshl_b32 s66, {sG}, 1
    s_add_u32 s66, s66, s68
    s_lshl_b32 s66, s66, 18
    s_lshl_b32 s11, {sB}, 1
    s_add_u32 s11, s11, s69
    s_lshl_b32 s11, s11, 12
    s_add_u32 s66, s66, s11
    s_add_u32 s67, s67, s66
    s_lshl_b32 s65, {sP}, 4
    s_add_u32 s65, s65, {sB}
    s_lshl_b32 s65, s65, 7
    s_add_u32 s64, s65, {LFL_OFF:#x}
    s_add_u32 s65, s65, {GFL_OFF:#x}
    s_and_b32 s10, s2, 7
    s_lshl_b32 s10, s10, 15
    s_lshr_b32 s12, s2, 3
    s_lshl_b32 s12, s12, 10
    s_add_u32 s10, s10, s12
    s_add_u32 s10, s10, {GFL_OFF:#x}
    v_lshl_add_u32 v8, {vLANE}, 7, s10
    s_lshl_b32 s10, s68, 15
    s_add_u32 s10, s10, s64
    v_mov_b32 v9, s10
    s_cmp_eq_u32 {sHW}, 0
    s_cselect_b64 vcc, -1, 0
    v_cndmask_b32 v16, v9, v8, vcc
    s_waitcnt lgkmcnt(0)""")
srd(SWS, 38, WS_SIZE)
E(f"""    s_mov_b64 exec, 0xff
    buffer_load_dword v143, v16, {SWS}, 0 offen sc1
    s_mov_b64 exec, -1
    s_cmp_eq_u32 {sTY}, 1
    s_cbranch_scc1 L_gV""")
def mm(kind, x, w, first):
    c = "0" if first else "v[0:15]"
    xs, ws_ = f"v[{x}:{x+3}]", f"v[{w}:{w+3}]"
    if kind == "V": E(f"    v_mfma_f32_32x32x16_bf16 v[0:15], {xs}, {ws_}, {c}")
    else: E(f"    v_mfma_f32_32x32x16_bf16 v[0:15], {ws_}, {xs}, {c}")
def publish(counter, local_soff, glob):
    l = newlab("nofl")
    E(f"""    s_mov_b64 exec, 1
    ds_add_rtn_u32 v147, {vSY}, v145 offset:{SY[counter]}
    s_waitcnt lgkmcnt(0)
    v_cmp_eq_u32 vcc, 3, v147
    s_cbranch_vccz {l}
    buffer_store_dword v144, v146, {SWS}, {local_soff} offen""")
    if glob:
        E(f"""    ds_add_u32 {vSY}, v145 offset:{SY['KVP']}
    s_mov_b64 exec, 0xff
    buffer_store_dword v144, v146, {SWS}, s65 offen sc1""")
    L(l)
    E("    s_mov_b64 exec, -1")
def fgemm(kind):
    for c in range(8):
        if c == 7: E("    s_waitcnt vmcnt(0)")
        E("    s_barrier")
        for ks in range(4):
            w = 16 + 16 * c + 4 * ks
            E(f"""    ds_read_b128 v[{144+4*ks}:{147+4*ks}], v{160+ks} offset:{c*8192}
    ds_read_b64_tr_b16 v[{w}:{w+1}], v164 offset:{c*8192+ks*2048}
    ds_read_b64_tr_b16 v[{w+2}:{w+3}], v164 offset:{c*8192+ks*2048+512}""")
        for ks in range(4):
            E(f"    s_waitcnt lgkmcnt({9-3*ks})")
            mm(kind, 144 + 4 * ks, 16 + 16 * c + 4 * ks, c == 0 and ks == 0)
    for ks in range(4): E(f"    v_add_u32 v{160+ks}, {LG:#x}, v{160+ks}")
    E(f"    ds_read_b32 v164, {vSY} offset:{SY['TAG']}\n    s_nop 6")
    for i in range(8): E(f"    v_cvt_pk_bf16_f32 v{144+i}, v{2*i}, v{2*i+1}")
    E(f"""    buffer_store_dwordx4 v[144:147], v165, {SWS}, s66 offen sc1
    buffer_store_dwordx4 v[148:151], v165, {SWS}, s67 offen sc1""")
    stamp(1)
    E(f"""    s_waitcnt lgkmcnt(0)
    v_readfirstlane_b32 {sTAG}, v164
    s_barrier                             ; #8""")
    for ks in range(4): E(f"    ds_read_b128 v[{144+4*ks}:{147+4*ks}], v{160+ks}")
    for ks in range(4):
        E(f"    s_waitcnt lgkmcnt({3-ks})")
        mm(kind, 144 + 4 * ks, 16 + 4 * ks, ks == 0)
    for ks in range(4): E(f"    ds_read_b128 v[{144+4*ks}:{147+4*ks}], v{160+ks} offset:8192")
    for ks in range(4):
        E(f"    s_waitcnt lgkmcnt({3-ks})")
        mm(kind, 144 + 4 * ks, 32 + 4 * ks, False)
    for g in range(1, 4):
        E("    s_barrier")
        for cc in range(2):
            c = 2 * g + cc
            for ks in range(4):
                x = 16 + 16 * (c - 2) + 4 * ks
                E(f"    ds_read_b128 v[{x}:{x+3}], v{160+ks} offset:{c*8192}")
        for cc in range(2):
            c = 2 * g + cc
            for ks in range(4):
                E(f"    s_waitcnt lgkmcnt({7-4*cc-ks})")
                mm(kind, 16 + 16 * (c - 2) + 4 * ks, 16 + 16 * c + 4 * ks, False)
fgemm("K")
E("    s_branch L_genE")
L("L_gV")
fgemm("V")
L("L_genE")
E(f"""    v_mbcnt_lo_u32_b32 {vLANE}, -1, 0
    v_mbcnt_hi_u32_b32 {vLANE}, -1, {vLANE}
    v_mov_b32 v144, {sTAG}
    v_mov_b32 v145, 1
    v_lshlrev_b32 v146, 15, {vLANE}
    s_nop 6""")
for i in range(8): E(f"    v_cvt_pk_bf16_f32 v{16+i}, v{2*i}, v{2*i+1}")
E(f"""    buffer_store_dwordx4 v[16:19], v165, {SWS}, s66 offen offset:2048 sc1
    buffer_store_dwordx4 v[20:23], v165, {SWS}, s67 offen offset:2048 sc1
    s_waitcnt vmcnt(2)""")
publish("KVA", "s64", False)
E("    s_add_u32 s64, s64, 0x8000")
stamp(2)
E("    s_branch L_att")

ROLE[0] = "R"
L("L_R")
E(f"""    s_waitcnt lgkmcnt(0)""")
srd(ST, 36, 256)
E(f"""    v_mov_b32 v110, 0
    s_xor_b32 s11, {sW}, 8
    s_or_b32 s11, s11, s2
    s_cmp_lg_u32 s11, 0
    s_cbranch_scc1 L_noepoch
    s_memrealtime s[12:13]
    s_waitcnt lgkmcnt(0)
    s_or_b32 s12, s12, 1
    v_mov_b32 v8, s12
    s_mov_b64 exec, 1
    buffer_store_dword v8, v110, {ST}, 0 offen sc0 sc1
    s_mov_b64 exec, -1""")
L("L_noepoch")
if PREFETCH:
    E(f"""    s_getpc_b64 s[60:61]
L_pcref:
    s_sub_u32 s60, s60, L_pcref-{NAME}
    s_subb_u32 s61, s61, 0
    s_lshr_b32 s11, s2, 3
    s_lshl_b32 s11, s11, 2
    s_add_u32 s11, s11, {sHW}
    s_lshl_b32 s11, s11, 8
    v_lshl_add_u32 v108, {vLANE}, 7, s11
    v_min_u32 v108, L_end-{NAME}, v108
    s_mov_b64 exec, 3
    global_load_dword v109, v108, s[60:61]
    s_mov_b64 exec, -1""")
E(f"""    v_lshl_add_u32 v8, {vLANE}, 2, {vSY}
    v_mov_b32 v146, 0
    ds_write_b32 v8, v110
    s_lshl_b32 s11, s68, 16
    v_add_u32 v80, s11, v160
    v_xor_b32 v81, 32, v80
    v_xor_b32 v82, 64, v80
    v_xor_b32 v83, 0x60, v80
    v_lshl_add_u32 v85, v6, 6, v7
    v_add_u32 v84, {LQ:#x}, v85
    v_mov_b32 {vONE}, 1
    v_lshlrev_b32 {vL16}, 4, {vLANE}
    s_lshl_b32 s12, s69, 12
    s_add_u32 s11, s11, s12
    v_add_u32 v86, s11, {vL16}
    v_lshrrev_b32 v2, 3, {vLANE}
    v_add_u32 v4, {sROT}, v2
    v_and_b32 v4, 7, v4
    v_and_b32 v5, 7, {vLANE}
    v_lshlrev_b32 v6, 4, v5
    v_lshl_add_u32 v87, v4, 7, v6
    s_lshl_b32 s11, {sP}, 2
    s_add_u32 s11, s11, {sHW}
    s_and_b32 s12, s11, 7
    v_xor_b32 v5, s12, v5
    v_lshlrev_b32 v5, 4, v5
    v_lshl_add_u32 v5, v2, 13, v5
    s_and_b32 s12, s11, 31
    s_lshl_b32 s12, s12, 8
    s_lshr_b32 s13, s11, 5
    s_lshl_b32 s13, s13, 16
    s_add_u32 s12, s12, s13
    v_add_u32 v88, s12, v5
    s_lshl_b32 s12, {sB}, 6
    s_add_u32 s79, s11, s12""")
srd(SWS, 38, WS_SIZE)
srd(SX, 24, 1024)
srd(ST2, 32, 1024)
E(f"""    buffer_load_dwordx4 v[92:95], v87, {SX}, 0 offen
    buffer_load_dwordx4 v[96:99], v87, {ST2}, 0 offen
    s_getreg_b32 s93, hwreg(HW_REG_XCC_ID, 0, 4)
    s_and_b32 s10, s2, 7
    s_lshl_b32 s10, s10, 8
    s_add_u32 s10, s10, {XID_OFF:#x}
    v_and_b32 v2, 31, {vLANE}
    v_lshl_add_u32 v89, v2, 3, s10
    s_lshr_b32 s11, s2, 3
    s_lshl_b32 s11, s11, 3
    s_add_u32 s10, s10, s11
    v_mov_b32 v90, s10
    s_waitcnt lgkmcnt(0)
    s_barrier
    buffer_load_dword v111, v110, {ST}, 0 offen sc0 sc1
    s_barrier
    s_barrier
    s_mov_b32 {sSPIN}, 0""")
L("L_tag")
E(f"""    s_waitcnt vmcnt(0)
    v_readfirstlane_b32 {sTAG}, v111
    s_add_u32 {sSPIN}, {sSPIN}, 1
    s_cmp_lg_u32 {sTAG}, 0
    s_cbranch_scc1 L_tagok
    buffer_load_dword v111, v110, {ST}, 0 offen sc0 sc1
    s_cmp_lt_u32 {sSPIN}, {SPIN_MAX}
    s_cbranch_scc1 L_tag""")
L("L_tagok")
E(f"""    s_cmp_lg_u32 {sW}, 11
    s_cbranch_scc1 L_rb
    v_mov_b32 v2, s93
    v_mov_b32 v3, {sTAG}
    s_mov_b64 exec, 1
    buffer_store_dwordx2 v[2:3], v90, {SWS}, 0 offen sc1
    ds_write_b32 {vSY}, v3 offset:{SY['TAG']}
    s_mov_b64 exec, -1
    s_waitcnt lgkmcnt(0)""")
L("L_rb")
for i in range(5): E("    s_barrier")
E(f"""    s_cmp_lg_u32 {sW}, 11
    s_cbranch_scc1 L_rb1
    buffer_load_dwordx2 v[2:3], v89, {SWS}, 0 offen sc1""")
L("L_rb1")
E(f"""    s_barrier                             ; #8
    ds_read_b128 v[100:103], v88
    ds_read_b128 v[104:107], v88 offset:128""")
for ks in range(4): E(f"    ds_read_b128 v[{16+4*ks}:{19+4*ks}], v{80+ks}")
E(f"""    s_waitcnt lgkmcnt(0)
    s_barrier                             ; #9
    s_barrier                             ; #10
    s_cmp_lg_u32 {sW}, 11
    s_cbranch_scc1 L_rb2
    s_mov_b32 {sSPIN}, 0""")
L("L_xid")
E(f"""    s_waitcnt vmcnt(0)
    v_cmp_ne_u32 vcc, {sTAG}, v3
    s_cbranch_vccz L_xidok
    buffer_load_dwordx2 v[2:3], v89, {SWS}, 0 offen sc1
    s_add_u32 {sSPIN}, {sSPIN}, 1
    s_cmp_lt_u32 {sSPIN}, {SPIN_MAX}
    s_cbranch_scc1 L_xid
    s_waitcnt vmcnt(0)""")
L("L_xidok")
E(f"""    v_cmp_ne_u32 s[10:11], s93, v2
    s_or_b64 vcc, vcc, s[10:11]
    s_cmp_eq_u64 vcc, 0
    s_cselect_b32 s10, {2 if FORCE_REMOTE else 1}, 2
    v_mov_b32 v2, s10
    ds_write_b32 {vSY}, v2 offset:{SY['LOC']}
    s_waitcnt lgkmcnt(0)""")
L("L_rb2")
E(f"""    s_barrier                             ; #11
    s_cmp_lt_u32 {sP}, 8
    s_cbranch_scc1 L_rb3
    ds_read_b128 v[100:103], v88
    ds_read_b128 v[104:107], v88 offset:128""")
L("L_rb3")
for j in range(4): E(f"    v_mov_b32 v{32+j}, 0")
E("    s_waitcnt lgkmcnt(0)")
signal("WQB")
for q in range(4):
    for j, (xr, wr) in enumerate(((100, 92), (100, 96), (104, 92), (104, 96))):
        E(f"    v_dot2_f32_bf16 v{32+j}, v{xr+q}, v{wr+q}, v{32+j}")
E("    s_nop 2")
for dpp in DPPS:
    for j in range(4):
        E(f"    v_add_f32_dpp v{32+j}, v{32+j}, v{32+j} {dpp}")
E(f"""    v_cvt_pk_bf16_f32 v100, v32, v34
    v_cvt_pk_bf16_f32 v101, v33, v35""")
def qreads(c):
    b = 16 + 32 * (c & 1)
    for ks in range(4):
        wo = c * 4096 + ks * 1024
        wa = "v84"
        if c == 7 and ks == 3:
            wa, wo = "v85", WQREL
        if c: E(f"    ds_read_b128 v[{b+4*ks}:{b+3+4*ks}], v{80+ks} offset:{c*8192}")
        E(f"""    ds_read_b64_tr_b16 v[{b+16+4*ks}:{b+17+4*ks}], {wa} offset:{wo}
    ds_read_b64_tr_b16 v[{b+18+4*ks}:{b+19+4*ks}], {wa} offset:{wo+256}""")
lwait("WQA", 4, sleep=1)
stamp(1)
qreads(0)
for c in range(8):
    E("    s_waitcnt lgkmcnt(0)")
    b = 16 + 32 * (c & 1)
    if c == 3:
        for ks in range(4): mm("K", b + 4 * ks, b + 16 + 4 * ks, False)
        lwait("WQB", 8, sleep=1)
        qreads(c + 1)
    else:
        if c < 7: qreads(c + 1)
        for ks in range(4): mm("K", b + 4 * ks, b + 16 + 4 * ks, c == 0 and ks == 0)
E(f"""    s_mov_b32 s11, {LOG2E:#x}
    v_lshlrev_b32 v38, 16, v101
    v_and_b32 v39, 0xffff0000, v101
    v_mul_f32 v38, s11, v38
    v_mul_f32 v39, s11, v39
    v_exp_f32 v38, -v38
    v_exp_f32 v39, -v39
    v_lshlrev_b32 v40, 16, v100
    v_and_b32 v41, 0xffff0000, v100
    v_add_f32 v38, 1.0, v38
    v_add_f32 v39, 1.0, v39
    s_mov_b32 s10, {QSCALE:#x}
    s_mov_b32 s11, s10""")
for i in range(0, 16, 2):
    E(f"    v_pk_mul_f32 v[{i}:{i+1}], v[{i}:{i+1}], s[10:11]")
for i in range(8):
    E(f"    v_cvt_pk_bf16_f32 v{16+i}, v{2*i}, v{2*i+1}")
E(f"""    ds_write_b128 v86, v[16:19]
    ds_write_b128 v86, v[20:23] offset:1024
    v_rcp_f32 v38, v38
    v_rcp_f32 v39, v39
    v_ashrrev_i32 v42, 31, v40
    v_ashrrev_i32 v43, 31, v41
    s_waitcnt lgkmcnt(0)""")
signal("Q1")
E(f"""    v_cvt_pk_bf16_f32 v6, v38, v39
    v_or_b32 v42, 0x80000000, v42
    v_or_b32 v43, 0x80000000, v43
    v_xor_b32 v40, v40, v42
    v_xor_b32 v41, v41, v43
    v_and_b32 v40, 0xffff0000, v40
    v_and_b32 v41, 0xffff0000, v41
    s_lshl_b32 s12, s79, 1
    s_sub_u32 s12, 2047, s12
    s_sub_u32 s13, s12, 1
    v_or_b32 v40, s12, v40
    v_or_b32 v41, s13, v41
    v_max_u32 v4, v40, v41
    v_mov_b32 v5, {sTAG}
    v_mov_b32 v7, {sTAG}
    s_lshl_b32 s11, s79, 4
    s_add_u32 s11, s11, {RG_OFF:#x}
    v_mov_b32 v3, s11
    s_mov_b32 exec_lo, 0
    s_mov_b32 exec_hi, 0x80000000
    buffer_store_dwordx4 v[4:7], v3, {SWS}, 0 offen sc1
    s_mov_b64 exec, -1""")
stamp(2)

ROLE[0] = "A"
RB = 112
def K(s): return f"v[{RB+12*s}:{RB+3+12*s}]"
def V0(s): return f"v[{RB+4+12*s}:{RB+7+12*s}]"
def V1(s): return f"v[{RB+8+12*s}:{RB+11+12*s}]"
def O(u): return f"v[{32+16*u}:{47+16*u}]"
def Q(u): return f"v[{96+4*u}:{99+4*u}]"
SKV = ST2
def tile_loads(slot, odd):
    b = RB + 12 * slot
    o = 2048 if odd else 0
    E(f"""    buffer_load_dwordx4 v[{b}:{b+3}], {vL16}, {SKV}, {sSOFF} offen offset:{o} sc1
    s_mov_b64 exec, {sVM}
    buffer_load_dwordx4 v[{b+4}:{b+7}], {vVA}, {SKV}, {sSOFF} offen offset:{o+1024} sc1
    buffer_load_dwordx4 v[{b+8}:{b+11}], {vVA}, {SKV}, {sSOFF} offen offset:{o+1536} sc1
    s_mov_b64 exec, -1""")
def nextpair():
    E(f"""    s_add_u32 {sSOFF}, {sSOFF}, 0x4000
    s_and_b32 {sSOFF}, {sSOFF}, 0x1ffff""")
L("L_att")
E(f"""    s_lshr_b32 s14, {sW}, 3               ; hs
    s_lshl_b32 s10, {sP}, 1
    s_add_u32 s10, s10, s14
    s_lshl_b32 s10, s10, 17
    s_add_u32 s56, s38, s10
    s_addc_u32 s57, s39, 0
    s_mov_b32 s58, 0x20000
    s_mov_b32 s59, 0x20000
    s_mov_b32 s70, 0xffff
    s_mov_b32 s71, 0xffff
    s_and_b32 s10, {sB}, 14
    s_lshl_b32 s11, s10, 1
    s_add_u32 s11, s11, {sHW}
    s_lshl_b32 {sSOFF}, s11, 12
    v_lshlrev_b32 {vL16}, 4, {vLANE}
    s_lshl_b32 s10, s68, 2
    v_add_u32 {vT0}, s10, {vSY}
    v_lshrrev_b32 v8, 5, {vLANE}
    v_and_b32 v9, 15, {vLANE}
    v_lshlrev_b32 v9, 4, v9
    v_lshl_add_u32 {vVA}, v8, 8, v9
    v_and_b32 v8, 31, {vLANE}
    v_cmp_eq_u32 vcc, 16, v8
    v_mov_b32 v8, 0x3f803f80
    v_mov_b32 {vIDX}, 0xdddddddd
    v_mov_b32 {vONE}, 1
    v_cndmask_b32 v8, 0, v8, vcc
    s_lshl_b32 s10, s14, 10
    v_add_u32 v11, s10, {vL16}
    v_add_u32 v12, {LG}, v11
    v_mov_b32 v9, v8""")
for r in range(4, 12, 2):
    E(f"    v_mov_b64 v[{RB+r}:{RB+r+1}], v[8:9]")
E(f"""    s_cmp_ge_u32 {sW}, 8
    s_cbranch_scc1 L_nopub
    s_waitcnt vmcnt(0)""")
publish("KVB", "s64", True)
L("L_nopub")
lwait("LA0", 1, sleep=1, vaddr=vT0)
stamp(3)
tile_loads(0, False)
for j in (1, 2, 3):
    for r in range(4, 12, 2):
        E(f"    v_mov_b64 v[{RB+12*j+r}:{RB+12*j+r+1}], v[8:9]")
for u in range(4):
    for i in range(0, 10, 2): E(f"    v_mov_b64 v[{32+16*u+i}:{33+16*u+i}], 0")
for i in range(24, 32, 2): E(f"    v_mov_b64 v[{i}:{i+1}], 0")
lwait("Q1", 4, sleep=1)
E(f"""    ds_read_b128 {Q(0)}, v11
    ds_read_b128 {Q(1)}, v11 offset:4096
    ds_read_b128 {Q(2)}, v12
    ds_read_b128 {Q(3)}, v12 offset:4096
    s_mov_b32 {sIT}, 0
    s_mov_b32 {sMODE}, 1
    s_mov_b32 {sNR}, 0x20000
    s_setprio {PRIOS[0]}
    s_waitcnt vmcnt(0) lgkmcnt(0)
    v_mfma_f32_32x32x16_bf16 v[0:15], {K(0)}, {Q(0)}, 0""")
stamp(4)
E("    s_nop 11")
E(".p2align 6")
L("L_loop")
for j in range(4):
    jp, jn = (j + 3) % 4, (j + 1) % 4
    for u in range(4):
        cur, prv = 16 * (u & 1), 16 * ((u + 1) & 1)
        ex(cur, 0, 3)
        E(f"    v_smfmac_f32_32x32x32_bf16 {O((u+3)%4)}, {V1(jp if u == 0 else j)}, v[{prv+8}:{prv+15}], {vIDX}")
        ex(cur, 3, 8)
        if u == 3:
            if j < 2:
                E(f"    s_cmp_lg_u32 {sMODE}, 0\n    s_cbranch_scc1 L_stubW{j}")
                L(f"L_retW{j}")
            E("    s_waitcnt vmcnt(6)")
        E(f"    v_mfma_f32_32x32x16_bf16 v[{prv}:{prv+15}], {K(jn if u == 3 else j)}, {Q((u+1)%4)}, 0")
        if u == 0:
            if j < 2:
                E(f"    s_cmp_lg_u32 {sMODE}, 0\n    s_cbranch_scc1 L_stubR{j}")
            if j & 1: nextpair()
            if j == 1: E(f"    s_mov_b32 s58, {sNR}")
            tile_loads(jp, not (j & 1))
            if j < 2: L(f"L_retR{j}")
        ex(cur, 8, 13)
        E(f"    v_smfmac_f32_32x32x32_bf16 {O(u)}, {V0(j)}, v[{cur}:{cur+7}], {vIDX}")
        ex(cur, 13, 16)
E(f"""    s_add_u32 {sIT}, {sIT}, 1
    s_cmp_eq_u32 {sIT}, 4
    s_cbranch_scc1 L_rend""")
for it in range(1, 4):
    l = newlab("pr")
    if it < 3: E(f"    s_cmp_lg_u32 {sIT}, {it}\n    s_cbranch_scc1 {l}")
    E(f"    s_setprio {PRIOS[it]}")
    if it == 1: stamp(5)
    if it == 3:
        E(f"    s_mov_b32 {sNR}, 0")
        lwait("MOED", 1, sleep=4)
    E("    s_branch L_loop")
    if it < 3: L(l)
L("L_stubR0")
E(f"""    ds_read_b32 {vT3}, {vT0} offset:{SY['LB0']}
    s_waitcnt lgkmcnt(0)
    v_cmp_le_u32 vcc, 1, {vT3}
    s_cbranch_vccz L_retR0""")
tile_loads(1, True)
E(f"""    s_mov_b32 {sMODE}, 2
    s_branch L_retR0""")
L("L_stubW0")
E(f"""    s_cmp_eq_u32 {sMODE}, 2
    s_cbranch_scc1 L_sw0""")
lwait("LB0", 1, sleep=1, vaddr=vT0)
tile_loads(1, True)
E(f"    s_mov_b32 {sMODE}, 2")
L("L_sw0")
E("    s_waitcnt vmcnt(0)\n    s_branch L_retW0")
L("L_stubR1")
E(f"""    ds_read_b32 {vT3}, {vSY} offset:{SY['KVOK']}
    s_waitcnt lgkmcnt(0)
    v_cmp_le_u32 vcc, 1, {vT3}
    s_cbranch_vccz L_retR1
    s_mov_b32 {sMODE}, 3
    s_branch L_fill""")
L("L_stubW1")
lwait("KVOK", 1, sleep=1)
L("L_fill")
nextpair()
tile_loads(2, False)
tile_loads(3, True)
nextpair()
tile_loads(0, False)
signal("FILL")
stamp(8)
E(f"""    s_cmp_eq_u32 {sMODE}, 3
    s_mov_b32 {sMODE}, 0
    s_cbranch_scc1 L_retR1
    s_branch L_retW1""")
L("L_rend")
E(f"""    v_smfmac_f32_32x32x32_bf16 {O(3)}, {V1(3)}, v[24:31], {vIDX}
    s_mul_i32 s10, {sHW}, {PSLOT}
    s_lshl_b32 s11, s14, 16
    s_add_u32 s10, s10, s11
    s_add_u32 s10, s10, {PART_F}
    v_add_u32 {vT0}, s10, {vL16}
    v_lshrrev_b32 {vT3}, 2, {vL16}
    v_add_u32 {vT3}, s10, {vT3}
    s_lshl_b32 s10, s14, 2
    v_add_u32 {vSY}, s10, {vSY}""")
for u in range(4):
    E(f"""    ds_write_b128 {vT0}, v[{32+16*u}:{35+16*u}] offset:{u*2304}
    ds_write_b128 {vT0}, v[{36+16*u}:{39+16*u}] offset:{u*2304+1024}
    ds_write_b32 {vT3}, v{40+16*u} offset:{u*2304+2048}""")
E(f"""    s_waitcnt lgkmcnt(0)""")
signal("RED0")
stamp(6)
L("L_exit")
if "--fixdur" in sys.argv:
    E(f"""L_fd:
    s_memrealtime s[84:85]
    s_waitcnt lgkmcnt(0)
    s_sub_u32 s84, s84, {"s90" if "--own" in sys.argv else sTAG}
    s_cmp_lt_u32 s84, {opt("dur", "4000")}
    s_cbranch_scc1 L_fd""")
if DIAG:
    stamp(7)
    E(f"""    s_mul_i32 s10, s2, 12
    s_add_u32 s10, s10, {sW}
    s_lshl_b32 s10, s10, 7
    s_add_u32 s10, s10, {STAMP_OFF:#x}
    v_lshrrev_b32 v2, 2, {vL16}
    s_mov_b32 exec_hi, 0
    buffer_store_dword {vSTAMP}, v2, {SWS}, s10 offen""")
L("L_end")
E(f"""    s_endpgm
.section .rodata,"a"
.p2align 6
.amdhsa_kernel {NAME}
  .amdhsa_next_free_vgpr 168
  .amdhsa_next_free_sgpr 96
  .amdhsa_accum_offset 168
  .amdhsa_group_segment_fixed_size 0
  .amdhsa_kernarg_size 96
  .amdhsa_user_sgpr_count 2
  .amdhsa_user_sgpr_kernarg_segment_ptr 1
  .amdhsa_system_sgpr_workgroup_id_x 1
.end_amdhsa_kernel""")

txt = "\n".join(out) + "\n"
dst = [a for a in sys.argv[1:] if not a.startswith("--")]
open(dst[0] if dst else "gated_mix__mha_block__moe_arch_mod__prompt.s", "w").write(txt)
```
